```python
import torch

def _softmax(x, axis=-1):
    return torch.softmax(x, dim=axis)
def _gelu(x):
    return torch.nn.functional.gelu(x, approximate="tanh")
def _silu(x):
    return torch.nn.functional.silu(x)
def _sigmoid(x):
    return torch.sigmoid(x)
def _layernorm(x, axis=-1, eps=1e-5):
    m = x.mean(dim=axis, keepdim=True)
    v = x.var(dim=axis, keepdim=True, unbiased=False)
    return (x - m) / torch.sqrt(v + eps)
def _scatter_add(tgt, idx, src, axis=0):
    return tgt.clone().index_add_(axis, idx, src)
def _segment_sum(src, seg, n):
    out = torch.zeros((n,) + src.shape[1:], dtype=src.dtype)
    return out.index_add_(0, seg, src)
def _pad(x, pw):
    flat = tuple(v for pair in reversed(pw) for v in pair)
    return torch.nn.functional.pad(x, flat)

kernel_name = 'sequential_preLN__sliding_local_dilated__mixer_s_mlp__prompt'

def setup_inputs():

    _w = (lambda a: (lambda t: t.to(torch.bfloat16) if t.is_floating_point() else t)(torch.as_tensor(a)))
    def _A_setup():
        B, S, D = 1, 2048, 640
        return {
            "x": _w((lambda *s: torch.randn(*s, dtype=torch.bfloat16) * 0.05)(B, S, D)),
            "wqkv": _w((lambda *s: torch.randn(*s, dtype=torch.bfloat16) * 0.05)(D, 3 * D)),
            "wo": _w((lambda *s: torch.randn(*s, dtype=torch.bfloat16) * 0.05)(D, D)),
        }
    _A_in = _A_setup()

    def _B_setup():
        B, S, D, F = 1, 2048, 640, 1728
        return {
            "x":  _w((lambda *s: torch.randn(*s, dtype=torch.bfloat16) * 0.05)(B, S, D)),
            "w1": _w((lambda *s: torch.randn(*s, dtype=torch.bfloat16) * 3.2)(D, D) * (D ** -0.5)),
            "w2": _w((lambda *s: torch.randn(*s, dtype=torch.bfloat16) * 3.2)(D, D) * (D ** -0.5)),
            "w3": _w((lambda *s: torch.randn(*s, dtype=torch.bfloat16) * 3.2)(D, F) * (D ** -0.5)),
            "w4": _w((lambda *s: torch.randn(*s, dtype=torch.bfloat16) * 1.6)(F, D) * (F ** -0.5)),
        }
    _B_in = _B_setup()

    return {
        "A_x": _A_in["x"],
        "A_wqkv": _A_in["wqkv"],
        "A_wo": _A_in["wo"],
        "B_x": _B_in["x"],
        "B_w1": _B_in["w1"],
        "B_w2": _B_in["w2"],
        "B_w3": _B_in["w3"],
        "B_w4": _B_in["w4"],
    }

def reference(A_x, A_wqkv, A_wo, B_x, B_w1, B_w2, B_w3, B_w4):
    def _A_ref(x, wqkv, wo):
        B, S, D = x.shape
        H = 32; Dh = D // H
        W, dil = 8, 2
        qkv = (lambda x, *d: x.permute(*d))((x @ wqkv).reshape(B, S, 3, H, Dh), 2, 0, 3, 1, 4)
        q, k, v = qkv[0], qkv[1], qkv[2]
        scale = Dh ** -0.5
        pos = torch.arange(S)
        off = torch.arange(W) * dil
        idx = pos[:, None] - off[None, :]
        mask = idx >= 0
        idx_c = torch.where(mask, idx, 0).reshape(-1)
        kg = k[:, :, idx_c, :].reshape(B, H, S, W, Dh)
        vg = v[:, :, idx_c, :].reshape(B, H, S, W, Dh)
        logits = torch.einsum("bhsd,bhswd->bhsw", q, kg) * scale
        logits = torch.where(mask[None, None, :, :], logits, -1e9)
        attn = _softmax(logits, axis=-1)
        o = torch.einsum("bhsw,bhswd->bhsd", attn, vg)
        return (lambda x, *d: x.permute(*d))(o, 0, 2, 1, 3).reshape(B, S, D) @ wo

    def _B_ref(x, w1, w2, w3, w4):
        B, S, D = x.shape
        h = _gelu(_layernorm(x, axis=-1) @ w1)
        c = D // 4
        g0 = _pad(h[:, :, 0*c:1*c], ((0, 0), (1, 0), (0, 0)))[:, :S, :]
        g1 = _pad(h[:, :, 1*c:2*c], ((0, 0), (0, 1), (0, 0)))[:, 1:, :]
        g2 = _pad(h[:, :, 2*c:3*c], ((0, 0), (2, 0), (0, 0)))[:, :S, :]
        g3 = _pad(h[:, :, 3*c:   ], ((0, 0), (0, 2), (0, 0)))[:, 2:, :]
        hs = torch.concatenate([g0, g1, g2, g3], axis=-1) @ w2
        x1 = x + hs
        h2 = _gelu(_layernorm(x1, axis=-1) @ w3) @ w4
        return x1 + h2

    x = A_x
    h = x + _A_ref(_layernorm(x, axis=-1), A_wqkv, A_wo)
    h2 = h + _B_ref(_layernorm(h, axis=-1), B_w1, B_w2, B_w3, B_w4)
    return h2
```

```python
import re

_REG = re.compile(r"^(-|abs\()?([vas])(\d+)\)?$")
_RNG = re.compile(r"^(-)?([vas])\[(\d+):(\d+)\]$")
TRANS = ("v_exp_f32", "v_log_f32", "v_rcp_f32", "v_rsq_f32", "v_sqrt_f32", "v_sin_f32", "v_cos_f32")


def regs_of(op):
    op = op.strip()
    m = _REG.match(op)
    if m:
        return {(m.group(2), int(m.group(3)))}
    m = _RNG.match(op)
    if m:
        return {(m.group(2), i) for i in range(int(m.group(3)), int(m.group(4)) + 1)}
    if op == "vcc":
        return {("s", "vcc")}
    if op in ("vcc_lo", "vcc_hi"):
        return {("s", "vcc")}
    if op == "m0":
        return {("s", "m0")}
    if op == "exec" or op in ("exec_lo", "exec_hi"):
        return {("s", "exec")}
    return set()


class Ins:
    __slots__ = ("text", "mn", "kind", "wr", "rd", "srcC", "ws", "opt", "trans", "wide", "perm", "dpp", "ldsdma", "srcAB", "rdlane")

    def __init__(self, text, opt=False):
        self.text = text
        t = text.split(";")[0].strip()
        parts = t.split(None, 1)
        mn = parts[0]
        self.mn = mn
        rest = parts[1] if len(parts) > 1 else ""
        ops = [o.strip() for o in rest.split(",")] if rest else []
        if ops:
            last = ops[-1].split()
            ops[-1] = last[0] if last else ""
            mods = last[1:]
        else:
            mods = []
        self.wr, self.rd, self.srcC, self.srcAB = set(), set(), set(), set()
        self.ws = 1
        self.opt = opt
        base = re.sub(r"_(e32|e64|dpp|sdwa)$", "", mn)
        self.trans = base in TRANS
        self.wide = False
        self.perm = base.startswith("v_permlane")
        self.dpp = mn.endswith("_dpp")
        self.ldsdma = False
        self.rdlane = base in ("v_readfirstlane_b32", "v_readlane_b32")
        R = [regs_of(o) for o in ops]
        if mn.startswith("v_mfma"):
            self.kind = "mfma"
            self.wr = R[0]
            self.srcAB = R[1] | R[2]
            self.srcC = R[3]
            self.rd = self.srcAB | self.srcC
        elif mn.startswith("v_"):
            self.kind = "valu"
            self.wr = set(R[0])
            for r in R[1:]:
                self.rd |= r
            if self.perm:
                self.wr |= R[1]
                self.rd |= R[0]
            if base in ("v_fmac_f32", "v_dot2c_f32_bf16"):
                self.rd |= R[0]
            if base in ("v_cndmask_b32",) and len(ops) == 3:
                self.rd |= {("s", "vcc")}
            if base in ("v_add_co_u32", "v_addc_co_u32", "v_sub_co_u32"):
                self.wr |= R[1]
        elif mn.startswith("buffer_") or mn.startswith("global_"):
            self.kind = "vmem"
            allm = " ".join(mods)
            if "load" in mn and " lds" in (" " + allm):
                self.ldsdma = True
                for r in R:
                    self.rd |= r
                self.rd |= {("s", "m0")}
            elif "load" in mn:
                self.wr = R[0]
                for r in R[1:]:
                    self.rd |= r
            else:
                for r in R:
                    self.rd |= r
                if "x4" in mn or "x3" in mn:
                    self.wide = True
                    self.srcC = R[0] if mn.startswith("buffer_") else R[1]
        elif mn.startswith("ds_"):
            self.kind = "ds"
            if "read" in mn or "permute" in mn or "swizzle" in mn:
                self.wr = R[0]
                for r in R[1:]:
                    self.rd |= r
            else:
                for r in R:
                    self.rd |= r
        elif mn.startswith("s_"):
            self.kind = "salu"
            if mn == "s_nop":
                self.ws = int(ops[0], 0) + 1
            elif mn in ("s_waitcnt", "s_barrier", "s_sleep", "s_setprio", "s_endpgm") or mn.startswith("s_cbranch") or mn == "s_branch":
                pass
            elif mn.startswith("s_cmp") or mn.startswith("s_bitcmp"):
                for r in R:
                    self.rd |= r
            else:
                self.wr = set(R[0])
                for r in R[1:]:
                    self.rd |= r
        else:
            raise ValueError("unknown instruction: " + text)


def vonly(s):
    return {r for r in s if r[0] in "va"}


def sonly(s):
    return {r for r in s if r[0] == "s"}


def required(p, c):
    n = 0
    if p.kind == "valu":
        w = vonly(p.wr)
        if c.kind == "mfma" and w & c.rd:
            n = max(n, 2)
        if c.kind == "valu":
            if (c.perm or c.dpp) and w & c.rd:
                n = max(n, 2)
            if c.rdlane and w & c.rd:
                n = max(n, 1)
            if p.trans and not c.trans and w & c.rd:
                n = max(n, 1)
        if p.mn.startswith("v_dot") and w & (c.rd | c.wr):
            if not (c.mn == p.mn and w & c.wr and not (w & (c.rd - c.wr))):
                n = max(n, 3)
        sw = sonly(p.wr)
        if sw:
            if c.kind == "valu" and sw & c.rd:
                n = max(n, 2)
            if c.kind == "vmem" and sw & c.rd:
                n = max(n, 5)
            if c.kind == "salu" and sw & c.rd:
                n = max(n, 1)
    elif p.kind == "mfma":
        d = p.wr
        if c.kind == "mfma":
            if d & c.srcAB:
                n = max(n, 8)
            if d & c.srcC and c.srcC != d:
                n = max(n, 6)
            if d & c.wr and c.wr != d:
                n = max(n, 6)
        elif c.kind in ("valu", "vmem", "ds"):
            if d & (c.rd | c.wr):
                n = max(n, 8)
        if c.kind == "valu" and p.srcC & c.wr:
            n = max(n, 3)
    elif p.kind == "salu":
        if ("s", "m0") in p.wr and c.ldsdma:
            n = max(n, 1)
    elif p.kind == "vmem":
        if p.wide and p.srcC & c.wr:
            n = max(n, 2 if c.kind == "valu" else 1)
    return n


class Emitter:
    def __init__(self):
        self.out = []
        self.hist = []
        self.opt = False
        self.vmq = []
        self.lgq = []
        self.nlabel = 0
        self.nops = 0
        self.issued = set()

    def raw(self, s):
        self.out.append(s)

    def comment(self, s):
        self.out.append("; " + s)

    def label(self, name=None):
        if name is None:
            name = self.newlabel()
        self.out.append(name + ":")
        return name

    def newlabel(self):
        self.nlabel += 1
        return "L%d" % self.nlabel

    def I(self, text):
        c = Ins(text, self.opt)
        need = 0
        dist = 0
        for p in reversed(self.hist[-40:]):
            r = required(p, c)
            if r > dist:
                need = max(need, r - dist)
            if not (p.opt and not (c.opt and p.opt == c.opt)):
                dist += p.ws
            if dist >= 9:
                break
        if need:
            nop = Ins("s_nop %d" % (need - 1), self.opt)
            self.hist.append(nop)
            self.out.append("    " + nop.text)
            self.nops += 1
        self.hist.append(c)
        self.out.append("    " + text)
        return c

    def vm(self, text, tag=None):
        self.I(text)
        self.vmq.append(tag)
        self.issued.add(tag)
        k = len(self.vmq) - 1 - max([i for i, t in enumerate(self.vmq) if t == "POLL"] + [-1])
        assert k <= 60, "too many vm ops in flight: %d" % k

    def lg(self, text, tag=None):
        self.I(text)
        self.lgq.append(tag)
        self.issued.add(tag)
        assert len(self.lgq) <= 15, "too many lgkm ops in flight"

    def forget(self, kind):
        self.issued = {t for t in self.issued if not (isinstance(t, tuple) and t[0] == kind)}

    def _cnt(self, q, tags):
        if not isinstance(tags, list):
            tags = [tags]
        for t in tags:
            assert t in self.issued, "waiting for never-issued op %r" % (t,)
        last = -1
        for i, t in enumerate(q):
            if t in tags:
                last = i
        if last < 0:
            return None
        assert "POLL" not in q[last:], "wait for %r crosses a poll loop" % (tags,)
        return len(q) - 1 - last

    def wait(self, vm=None, lg=None, vm0=False, lg0=False):
        parts = []
        if vm0:
            parts.append("vmcnt(0)")
            self.vmq = []
        elif vm is not None:
            n = self._cnt(self.vmq, vm)
            if n is not None:
                assert n <= 63, n
                parts.append("vmcnt(%d)" % n)
                self.vmq = self.vmq[len(self.vmq) - n:] if n else []
        if lg0:
            parts.append("lgkmcnt(0)")
            self.lgq = []
        elif lg is not None:
            n = self._cnt(self.lgq, lg)
            if n is not None:
                assert n <= 15, n
                parts.append("lgkmcnt(%d)" % n)
                self.lgq = self.lgq[len(self.lgq) - n:] if n else []
        if parts:
            self.I("s_waitcnt " + " ".join(parts))

    def text(self):
        return "\n".join(self.out) + "\n"
```

```python
import sys, math, struct
from emit import Emitter

NAME = "sequential_preLN__sliding_local_dilated__mixer_s_mlp__prompt"

XN, XR, O_, H_, H1, X1 = 0x0000000, 0x0280000, 0x0500000, 0x0780000, 0x0A00000, 0x0C80000
G_ = 0x0F00000
WQ, WO, W1, W2, W3, W4 = 0x1600000, 0x1880000, 0x1980000, 0x1A80000, 0x1B80000, 0x1E00000
ST2, ST4, CS1, CS3 = 0x2100000, 0x2120000, 0x2140000, 0x2150000
FL = 0x2200000
F_XN, F_WQ, F_O, F_H, F_H1, F_X1, F_G = FL, FL + 0x4000, FL + 0x8000, FL + 0xC000, FL + 0x10000, FL + 0x14000, FL + 0x18000
F_WO, F_W1, F_W2, F_W3, F_W4 = FL + 0x1C000, FL + 0x1D000, FL + 0x1E000, FL + 0x1F000, FL + 0x20000
EPOCH = 0x2300000
PROF = 0x2380000
WS_SIZE = 0x2400000
OOB = 0x80000000
RTK = 20480
RTG = 56 * 1024
LDS = 163840


def f2u(x):
    return struct.unpack("<I", struct.pack("<f", x))[0]


class Cfg:
    prof = False
    stop_after = 99
    spin_limit = 20000
    poll_sleep = 1


def gen(cfg):
    e = Emitter()
    I, vm, lg, wait = e.I, e.vm, e.lg, e.wait
    SC = "sc1"

    WS, SA, SB = "s[28:31]", "s[32:35]", "s[36:39]"
    sW, sXG, sJ, sRB4, sCB, sRB8, sHP = "s40", "s41", "s42", "s43", "s44", "s45", "s46"
    mP, mC0, mC1, mG0, mG1, mG3 = "s[48:49]", "s[50:51]", "s[52:53]", "s[54:55]", "s[56:57]", "s[58:59]"
    sK4 = lambda n: "0" if n == 0 else "s%d" % (76 + n)
    vLane, vL16, vNon, vPoll, vM, vG = "v1", "v2", "v3", "v4", "v5", "v6"
    vL64, vL128 = "v7", "v8"
    vThp = 10
    vTx1 = 22
    vMean, vRs1 = "v34", "v35"
    vWF = 36
    vT = 44
    nstamp = [0]

    def stamp(name):
        if not cfg.prof:
            return
        k = nstamp[0]
        nstamp[0] += 1
        cfg.stamps.append(name)
        I("s_memtime s[92:93]")
        I("s_waitcnt lgkmcnt(0)")
        e.lgq = []
        I("v_writelane_b32 v9, s92, %d" % k)

    cfg.stamps = []

    def v(i, n=1):
        return "v%d" % i if n == 1 else "v[%d:%d]" % (i, i + n - 1)

    def a(i, n=1):
        return "a%d" % i if n == 1 else "a[%d:%d]" % (i, i + n - 1)

    def poll(vaddr):
        L, D = e.newlabel(), e.newlabel()
        I("v_not_b32 %s, %s" % (vPoll, vNon))
        I("s_mov_b32 s60, 0")
        e.label(L)
        I("buffer_load_dword %s, %s, %s, 0 offen %s" % (vPoll, vaddr, WS, SC))
        for _ in range(3):
            I("s_sleep %d" % cfg.poll_sleep) if cfg.poll_sleep else I("s_nop 7")
            I("v_cmp_ne_u32 vcc, %s, %s" % (vPoll, vNon))
            I("s_cbranch_vccz %s" % D)
        I("s_add_u32 s60, s60, 1")
        I("s_cmp_lt_u32 s60, %d" % cfg.spin_limit)
        I("s_cbranch_scc1 %s" % L)
        e.label(D)
        e.vmq.append("POLL")

    def flag_store(vaddr):
        I("s_mov_b64 exec, 1")
        vm("buffer_store_dword %s, %s, %s, 0 offen %s" % (vNon, vaddr, WS, SC), "flag")
        I("s_mov_b64 exec, -1")

    def check_wflag(k, vaddr_calc):
        D = e.newlabel()
        I("v_cmp_ne_u32 vcc, %s, %s" % (v(vWF + k), vNon))
        I("s_cbranch_vccz %s" % D)
        e.opt = e.newlabel()
        vaddr_calc("v63")
        L2, D2 = e.newlabel(), e.newlabel()
        I("s_mov_b32 s60, 0")
        e.label(L2)
        I("buffer_load_dword %s, v63, %s, 0 offen %s" % (v(vWF + k), WS, SC))
        I("s_waitcnt vmcnt(0)")
        I("v_cmp_ne_u32 vcc, %s, %s" % (v(vWF + k), vNon))
        I("s_cbranch_vccz %s" % D2)
        I("s_add_u32 s60, s60, 1")
        I("s_cmp_lt_u32 s60, %d" % cfg.spin_limit)
        I("s_cbranch_scc1 %s" % L2)
        e.label(D2)
        e.opt = False
        e.label(D)

    def wflag_addr(k):
        base, cnt, tile = [(F_WO, 16, sCB), (F_W1, 16, sCB), (F_W2, 16, sCB), (F_W3, 20, sHP), (F_W4, 36, sCB)][k]

        def calc(dst):
            I("s_lshl_b32 s61, %s, 8" % tile)
            I("s_add_u32 s61, s61, 0x%x" % base)
            I("v_min_u32 %s, %d, %s" % (dst, cnt - 1, vLane))
            I("v_lshl_add_u32 %s, %s, 2, s61" % (dst, dst))
        return calc

    class Img:
        def __init__(self, vbase, ring0):
            self.vb, self.ring0, self.wraps = vbase, ring0, 0

        def slot(self, f):
            return (self.ring0 + f) % 160

    def img_setup(img, gbase_sgpr):
        I("s_sub_u32 s61, %s, %d" % (gbase_sgpr, img.ring0 * 1024))
        I("v_add_u32 %s, s61, %s" % (img.vb, vL16))
        img.wraps = 0

    def dma_ops(img, f0, n, tag):
        ops = []
        assert n % 4 == 0
        runs = []
        f = f0
        while f < f0 + n:
            s = img.slot(f)
            ln = min(f0 + n - f, 160 - s)
            runs.append((f, ln))
            f += ln
        for (rf, ln) in runs:
            assert ln % 4 == 0, (rf, ln)
            q = ln // 4
            wr = (img.ring0 + rf) // 160
            s0 = img.slot(rf)
            for i in range(q):
                def op(i=i, q=q, s0=s0, wr=wr):
                    if i == 0:
                        while img.wraps < wr:
                            I("v_add_u32 %s, %d, %s" % (img.vb, LDS, img.vb))
                            img.wraps += 1
                        I("s_mul_i32 s62, %s, %d" % (sW, q * 1024))
                        I("s_add_u32 m0, s62, %d" % (s0 * 1024))
                    elif i % 4 == 0:
                        I("s_add_u32 m0, m0, 4096")
                    vm("buffer_load_dwordx4 %s, %s, m0 offen offset:%d lds" % (img.vb, WS, (i % 4) * 1024), tag)
                ops.append(op)
        return ops

    def dma(img, f0, n, tag):
        for op in dma_ops(img, f0, n, tag):
            op()

    def bread(dst, byte, tag):
        base = [vL16, vL64, vL128][byte >> 16]
        lg("ds_read_b128 %s, %s offset:%d" % (dst, base, byte & 0xffff), tag)

    def reduce_g(regs, op, tmp):
        for sw in ("v_permlane32_swap_b32", "v_permlane16_swap_b32"):
            for k, r in enumerate(regs):
                I("v_mov_b32 %s, %s" % (v(tmp + k), r))
            for k, r in enumerate(regs):
                I("%s %s, %s" % (sw, r, v(tmp + k)))
            for k, r in enumerate(regs):
                I("%s %s, %s, %s" % (op, r, r, v(tmp + k)))

    DONE = "L_done"
    I("s_cmp_ge_u32 s2, 256")
    I("s_cbranch_scc1 %s" % DONE)
    I("s_load_dwordx16 s[4:19], s[0:1], 0")
    I("s_load_dwordx4 s[20:23], s[0:1], 64")
    I("s_load_dwordx2 s[24:25], s[0:1], 80")
    I("s_getpc_b64 s[26:27]")
    e.label("L_pc")
    I("v_lshrrev_b32 v9, 6, v0")
    I("v_and_b32 %s, 63, v0" % vLane)
    I("v_readfirstlane_b32 %s, v9" % sW)
    I("v_lshlrev_b32 %s, 4, %s" % (vL16, vLane))
    I("v_and_b32 %s, 15, %s" % (vM, vLane))
    I("v_lshrrev_b32 %s, 4, %s" % (vG, vLane))
    I("v_add_u32 %s, 0x10000, %s" % (vL64, vL16))
    I("v_add_u32 %s, 0x20000, %s" % (vL128, vL16))
    I("s_and_b32 %s, s2, 7" % sXG)
    I("s_lshr_b32 %s, s2, 3" % sJ)
    I("s_lshr_b32 s60, %s, 3" % sJ)
    I("s_lshl_b32 %s, %s, 2" % (sRB4, sXG))
    I("s_add_u32 %s, %s, s60" % (sRB4, sRB4))
    I("s_and_b32 %s, %s, 7" % (sCB, sJ))
    I("s_lshr_b32 s60, %s, 4" % sJ)
    I("s_lshl_b32 %s, %s, 1" % (sRB8, sXG))
    I("s_add_u32 %s, %s, s60" % (sRB8, sRB8))
    I("s_and_b32 %s, %s, 15" % (sHP, sJ))
    I("s_lshl_b32 s60, %s, 2" % sJ)
    I("s_add_u32 s60, s60, %s" % sW)
    I("s_min_u32 s60, s60, CODE_KB-1")
    I("s_lshl_b32 s60, s60, 10")
    I("v_add_u32 v44, s60, %s" % vL16)
    I("v_mov_b32 v45, 0x%x" % EPOCH)
    if cfg.prof:
        I("v_mov_b32 v9, 0")
    for n in range(1, 14):
        I("s_mov_b32 %s, %d" % (sK4(n), 4096 * n))
    I("s_lshr_b32 s61, %s, 1" % sW)
    I("s_lshl_b32 s61, s61, 3")
    I("v_lshl_or_b32 v46, %s, 1, s61" % vG)
    I("v_xor_b32 v46, v46, %s" % vM)
    I("s_lshl_b32 s62, %s, 2" % sW)
    I("v_add_u32 v47, s62, %s" % vG)
    I("s_waitcnt lgkmcnt(0)")
    I("s_mov_b32 s28, s24")
    I("s_mov_b32 s29, s25")
    I("s_mov_b32 s30, 0x%x" % WS_SIZE)
    I("s_mov_b32 s31, 0x20000")
    I("s_mov_b32 s35, 0x20000")
    I("s_mov_b32 s39, 0x20000")
    stamp("start")

    L_XNI, L_NCS, L_NCI, L_WQP, L_XNP, L_CD, L_NCP = [e.newlabel() for _ in range(7)]
    I("s_cmp_lt_u32 s2, 80")
    I("s_cbranch_scc0 %s" % L_XNI)
    I("s_mov_b32 s63, 1")
    I("s_mov_b32 s32, s6")
    I("s_mov_b32 s33, s7")
    I("s_mov_b32 s34, %d" % (640 * 3840))
    I("s_and_b32 s64, s2, 15")
    I("s_lshr_b32 s65, s2, 4")
    I("v_mul_u32_u24 v48, 52, v46")
    I("v_lshrrev_b32 v48, 8, v48")
    I("v_mul_u32_u24 v49, 5, v48")
    I("v_sub_u32 v49, v46, v49")
    I("v_mul_u32_u24 v50, 1280, v48")
    I("v_lshl_add_u32 v50, v49, 4, v50")
    I("s_mul_i32 s66, s64, 80")
    I("s_mul_i32 s67, s65, %d" % (128 * 3840))
    I("s_add_u32 s66, s66, s67")
    I("s_movk_i32 s67, 3840")
    I("v_mad_u32_u24 v50, v47, s67, v50")
    I("v_add_u32 v50, s66, v50")
    I("v_cmp_gt_u32 vcc, 15, v46")
    I("v_mov_b32 v51, 0x%x" % OOB)
    I("v_cndmask_b32_e64 v50, v51, v50, vcc")
    I("s_lshl_b32 m0, %s, 10" % sW)
    for n in range(8):
        I("buffer_load_dwordx4 v50, %s, 0 offen lds" % SA)
        if n < 7:
            I("v_add_u32 v50, %d, v50" % (16 * 3840))
            I("s_add_u32 m0, m0, 4096")
    I("s_branch %s" % L_NCS)
    e.label(L_XNI)
    I("s_mov_b32 s63, 0")
    I("s_sub_u32 s64, s2, 80")
    I("s_cmp_lt_u32 s64, 128")
    I("s_cbranch_scc0 %s" % L_NCS)
    I("s_mov_b32 s63, 2")
    I("s_mov_b32 s32, s4")
    I("s_mov_b32 s33, s5")
    I("s_mov_b32 s34, %d" % (2048 * 1280))
    I("v_xor_b32 v48, v47, %s" % vM)
    I("v_mul_u32_u24 v50, 1280, v47")
    I("v_lshl_add_u32 v50, v48, 4, v50")
    I("s_mul_i32 s66, s64, %d" % RTK)
    I("v_add_u32 v50, s66, v50")
    I("s_mul_i32 m0, %s, 5120" % sW)
    for n in range(5):
        I("buffer_load_dwordx4 v50, %s, 0 offen lds" % SA)
        if n < 4:
            I("v_add_u32 v50, 256, v50")
            I("s_add_u32 m0, m0, 1024")
    e.label(L_NCS)
    L_A, L_B, L_C, L_S = [e.newlabel() for _ in range(4)]
    I("s_mov_b32 s68, 0")
    I("s_mov_b32 s36, s18")
    I("s_mov_b32 s37, s19")
    I("s_mov_b32 s38, %d" % (1728 * 1280))
    I("s_movk_i32 s66, 1280")
    I("s_mov_b32 s69, 10")
    I("s_movk_i32 s71, 5120")
    I("s_mov_b32 s72, 5")
    I("s_mov_b32 s73, 0x%x" % OOB)
    I("s_cmp_lt_u32 s2, 80")
    I("s_cbranch_scc0 %s" % L_A)
    I("s_cmp_lt_u32 s2, 72")
    I("s_cbranch_scc0 %s" % L_NCI)
    I("s_and_b32 s60, s2, 7")
    I("s_lshr_b32 s61, s2, 3")
    I("s_mov_b32 s68, 6")
    I("s_mul_i32 s70, s60, %d" % (54 * 5120))
    I("s_add_u32 s70, s70, 0x%x" % W4)
    I("s_mov_b32 s74, 0x%x" % F_W4)
    I("s_branch %s" % L_S)
    e.label(L_A)
    I("s_sub_u32 s62, s2, 80")
    I("s_cmp_lt_u32 s62, 96")
    I("s_cbranch_scc0 %s" % L_B)
    I("s_and_b32 s60, s62, 7")
    I("s_bfe_u32 s61, s62, 0x20003")
    I("s_lshr_b32 s62, s62, 5")
    I("s_mov_b32 s68, 5")
    I("s_mov_b32 s38, %d" % (640 * 1280))
    I("s_cmp_eq_u32 s62, 1")
    I("s_cselect_b64 s[36:37], s[12:13], s[8:9]")
    I("s_cselect_b32 s73, 0x%x, s73" % CS1)
    I("s_cmp_eq_u32 s62, 2")
    I("s_cselect_b64 s[36:37], s[14:15], s[36:37]")
    I("s_lshl_b32 s70, s62, 20")
    I("s_add_u32 s70, s70, 0x%x" % WO)
    I("s_mul_i32 s74, s60, 102400")
    I("s_add_u32 s70, s70, s74")
    I("s_lshl_b32 s74, s62, 12")
    I("s_add_u32 s74, s74, 0x%x" % F_WO)
    I("s_lshl_b32 s75, s60, 11")
    I("s_add_u32 s73, s73, s75")
    I("s_branch %s" % L_S)
    e.label(L_B)
    I("s_sub_u32 s62, s62, 96")
    I("s_and_b32 s60, s62, 15")
    I("s_lshr_b32 s61, s62, 4")
    I("s_mov_b32 s68, 4")
    I("s_mov_b32 s36, s16")
    I("s_mov_b32 s37, s17")
    I("s_mov_b32 s38, %d" % (640 * 3456))
    I("s_movk_i32 s66, 3456")
    I("s_mov_b32 s69, 14")
    I("s_movk_i32 s71, 7168")
    I("s_mov_b32 s72, 7")
    I("s_mul_i32 s70, s60, %d" % (20 * 7168))
    I("s_add_u32 s70, s70, 0x%x" % W3)
    I("s_mul_i32 s73, s60, %d" % (5 * 512))
    I("s_add_u32 s73, s73, 0x%x" % CS3)
    I("s_mov_b32 s74, 0x%x" % F_W3)
    e.label(L_S)
    I("s_mul_i32 s75, s61, s68")
    I("s_mul_i32 s67, s75, s66")
    I("s_lshl_b32 s67, s67, 5")
    I("s_mul_i32 s62, s60, s69")
    I("s_lshl_b32 s62, s62, 4")
    I("s_add_u32 s67, s67, s62")
    I("s_mul_i32 s75, s75, s71")
    I("s_add_u32 s70, s70, s75")
    I("s_lshl_b32 s75, s61, 9")
    I("s_add_u32 s73, s73, s75")
    I("s_lshl_b32 s75, s60, 8")
    I("s_add_u32 s74, s74, s75")
    I("s_lshl_b32 s75, s61, 2")
    I("s_add_u32 s75, s75, %s" % sW)
    I("s_lshl_b32 s75, s75, 2")
    I("s_add_u32 s74, s74, s75")
    I("v_mul_u32_u24 v50, s66, v47")
    I("v_lshl_add_u32 v50, v46, 4, v50")
    I("v_add_u32 v50, s67, v50")
    I("v_cmp_gt_u32 vcc, s69, v46")
    I("v_mov_b32 v51, 0x%x" % OOB)
    I("v_cndmask_b32_e64 v50, v51, v50, vcc")
    I("s_lshl_b32 s62, s66, 4")
    I("s_lshl_b32 m0, %s, 10" % sW)
    I("s_add_u32 m0, m0, 32768")
    I("s_lshl_b32 s61, s68, 1")
    L_l = e.label()
    I("buffer_load_dwordx4 v50, %s, 0 offen lds" % SB)
    I("v_add_u32 v50, s62, v50")
    I("s_add_u32 m0, m0, 4096")
    I("s_sub_u32 s61, s61, 1")
    I("s_cmp_lg_u32 s61, 0")
    I("s_cbranch_scc1 %s" % L_l)
    e.label(L_NCI)
    I("buffer_load_dword %s, v45, %s, 0 offen %s" % (vNon, WS, SC))
    I("global_load_dwordx4 a[252:255], v44, s[26:27]")
    L_w = [e.newlabel() for _ in range(4)]
    I("s_cmp_eq_u32 s68, 0")
    I("s_cbranch_scc1 %s" % L_w[0])
    I("s_cmp_eq_u32 s68, 4")
    I("s_cbranch_scc1 %s" % L_w[1])
    I("s_cmp_eq_u32 s68, 5")
    I("s_cbranch_scc1 %s" % L_w[2])
    I("s_waitcnt vmcnt(14)")
    I("s_branch %s" % L_w[3])
    e.label(L_w[0])
    I("s_waitcnt vmcnt(2)")
    e.label(L_w[1])
    I("s_waitcnt vmcnt(10)")
    e.label(L_w[2])
    I("s_waitcnt vmcnt(12)")
    e.label(L_w[3])
    I("s_barrier")
    stamp("crit_landed")
    I("v_lshrrev_b32 v46, 2, %s" % vM)
    I("v_and_b32 v47, 3, %s" % vLane)
    I("v_and_b32 v48, 1, %s" % vG)
    I("v_lshlrev_b32 v48, 2, v48")
    I("v_or_b32 v48, v48, v46")
    I("v_lshlrev_b32 v48, 5, v48")
    I("v_lshl_add_u32 v49, %s, 3, v46" % vG)
    I("v_lshlrev_b32 v49, 8, v49")
    I("s_cmp_eq_u32 s63, 1")
    I("s_cbranch_scc1 %s" % L_WQP)
    I("s_cmp_eq_u32 s63, 2")
    I("s_cbranch_scc1 %s" % L_XNP)
    I("s_waitcnt vmcnt(0)")
    I("s_branch %s" % L_NCP)

    def traddr(dst, vbyte):
        I("v_xor_b32 %s, %s, v48" % (dst, vbyte))
        I("v_add_u32 %s, %s, v49" % (dst, dst))

    e.label(L_WQP)
    I("s_mul_i32 s60, %s, 40" % sW)
    I("v_lshl_add_u32 v50, v47, 3, s60")
    I("s_lshl_b32 s60, %s, 5" % sW)
    I("s_add_u32 s60, s60, 128")
    I("v_lshl_add_u32 v51, v47, 3, s60")
    I("v_and_b32 v52, 1, v47")
    I("v_mul_u32_u24 v52, 80, v52")
    I("v_lshrrev_b32 v53, 1, v47")
    I("v_mul_u32_u24 v53, 40, v53")
    I("v_add3_u32 v52, v52, v53, 32")
    I("s_cmp_eq_u32 %s, 0" % sW)
    I("s_cselect_b64 vcc, -1, 0")
    I("v_cndmask_b32_e64 v51, v51, v52, vcc")
    traddr("v50", "v50")
    traddr("v51", "v51")
    for t in range(2):
        for ks in range(4):
            d = 64 + 16 * t + 4 * ks
            if t == 1 and ks == 3:
                I("s_waitcnt lgkmcnt(12)")
            I("ds_read_b64_tr_b16 %s, v%d offset:%d" % (v(d, 2), 50 + t, ks * 8192))
            I("ds_read_b64_tr_b16 %s, v%d offset:%d" % (v(d + 2, 2), 50 + t, ks * 8192 + 1024))
    I("s_mul_i32 s60, s64, 153600")
    I("s_mul_i32 s61, s65, %d" % (4 * 7680))
    I("s_add_u32 s60, s60, s61")
    I("s_lshl_b32 s61, %s, 10" % sW)
    I("s_add_u32 s60, s60, s61")
    I("s_add_u32 s60, s60, 0x%x" % WQ)
    I("v_add_u32 v52, s60, %s" % vL16)
    I("v_add_u32 v53, 4096, v52")
    I("v_and_b32 v54, 7, %s" % vM)
    I("v_lshl_add_u32 v54, %s, 3, v54" % vG)
    I("s_add_u32 s60, s60, 4096")
    I("v_lshl_add_u32 v54, v54, 4, s60")
    I("v_cmp_gt_u32 vcc, 8, %s" % vM)
    I("v_mov_b32 v55, 0x%x" % OOB)
    I("v_cndmask_b32_e64 v54, v55, v54, vcc")
    I("s_cmp_eq_u32 %s, 3" % sW)
    I("s_cselect_b64 vcc, -1, 0")
    I("v_cndmask_b32_e64 v53, v53, v54, vcc")
    for t in range(2):
        for ks in range(4):
            d = 64 + 16 * t + 4 * ks
            I("s_waitcnt lgkmcnt(%d)" % (14 - 8 * t - 2 * ks))
            I("buffer_store_dwordx4 %s, v%d, %s, 0 offen %s" % (v(d, 4), 52 + t, WS, SC))
            if ks < 3:
                I("v_add_u32 v%d, 7680, v%d" % (52 + t, 52 + t))
    I("s_lshl_b32 s60, s64, 8")
    I("s_lshl_b32 s61, s65, 4")
    I("s_add_u32 s60, s60, s61")
    I("s_add_u32 s60, s60, 0x%x" % F_WQ)
    I("s_branch %s" % L_CD)

    e.label(L_XNP)
    I("s_mul_i32 s60, %s, 20" % sW)
    I("v_add_u32 v50, s60, %s" % vG)
    I("v_lshrrev_b32 v51, 2, %s" % vM)
    I("v_mul_u32_u24 v51, 5120, v51")
    I("v_and_b32 v52, 3, %s" % vM)
    I("v_lshl_add_u32 v51, v52, 8, v51")
    for i in range(5):
        I("v_add_u32 v52, %d, v50" % (4 * i))
        I("v_lshrrev_b32 v53, 4, v52")
        I("v_and_b32 v52, 15, v52")
        I("v_xor_b32 v52, v52, %s" % vM)
        I("v_lshl_add_u32 v53, v53, 10, v51")
        I("v_lshl_add_u32 v53, v52, 4, v53")
        I("ds_read_b128 %s, v53" % v(64 + 4 * i, 4))
    I("s_mul_i32 s60, s64, %d" % RTK)
    I("s_mul_i32 s61, %s, 5120" % sW)
    I("s_add_u32 s60, s60, s61")
    I("v_add_u32 v54, s60, %s" % vL16)
    I("v_add_u32 v55, 0x%x, v54" % XR)
    I("s_mov_b32 s60, 0x3f803f80")
    I("v_mov_b32 v56, 0")
    I("v_mov_b32 v57, 0")
    I("v_mov_b32 v58, 0")
    I("v_mov_b32 v59, 0")
    for i in range(5):
        I("s_waitcnt lgkmcnt(%d)" % (4 - i))
        for k in range(4):
            r = 64 + 4 * i + k
            I("v_dot2c_f32_bf16 v%d, s60, v%d" % (56 + (k & 1), r))
            I("v_dot2c_f32_bf16 v%d, v%d, v%d" % (58 + (k & 1), r, r))
    I("v_add_f32 v56, v56, v57")
    I("v_add_f32 v57, v58, v59")
    reduce_g(["v56", "v57"], "v_add_f32", 58)
    I("s_lshl_b32 s61, %s, 7" % sW)
    I("s_add_u32 s61, s61, 24576")
    I("v_lshl_add_u32 v58, %s, 3, s61" % vM)
    I("ds_write_b64 v58, v[56:57]")
    for i in range(5):
        I("buffer_store_dwordx4 %s, v55, %s, %s offen offset:%d %s" % (v(64 + 4 * i, 4), WS, sK4(i >> 2), (i & 3) * 1024, SC))
    I("v_lshlrev_b32 v58, 3, %s" % vM)
    I("s_waitcnt lgkmcnt(0)")
    I("s_barrier")
    for ww in range(4):
        I("ds_read_b64 %s, v58 offset:%d" % (v(84 + 2 * ww, 2), 24576 + 128 * ww))
    I("s_mov_b32 s60, 0x%x" % f2u(1.0 / 640))
    I("s_waitcnt lgkmcnt(0)")
    I("v_pk_add_f32 v[84:85], v[84:85], v[86:87]")
    I("v_pk_add_f32 v[88:89], v[88:89], v[90:91]")
    I("v_pk_add_f32 v[84:85], v[84:85], v[88:89]")
    I("v_mul_f32 v84, s60, v84")
    I("v_mul_f32 v85, s60, v85")
    I("v_fma_f32 v85, -v84, v84, v85")
    I("v_max_f32 v85, 0, v85")
    I("v_add_f32 v85, 0x%x, v85" % f2u(1e-5))
    I("v_rsq_f32 v86, v85")
    I("v_mul_f32_e64 v88, -v84, v86")
    for i in range(5):
        for k in range(4):
            r = 64 + 4 * i + k
            t = 92 + 2 * k
            I("v_lshlrev_b32 v%d, 16, v%d" % (t, r))
            I("v_and_b32 v%d, 0xffff0000, v%d" % (t + 1, r))
        for k in range(4):
            t = 92 + 2 * k
            I("v_pk_fma_f32 %s, %s, v[86:87], v[88:89] op_sel_hi:[1,0,0]" % (v(t, 2), v(t, 2)))
        for k in range(4):
            t = 92 + 2 * k
            I("v_cvt_pk_bf16_f32 v%d, v%d, v%d" % (100 + 4 * i + k, t, t + 1))
        I("buffer_store_dwordx4 %s, v54, %s, %s offen offset:%d %s" % (v(100 + 4 * i, 4), WS, sK4(i >> 2), (i & 3) * 1024, SC))
    I("s_lshl_b32 s60, s64, 7")
    I("s_add_u32 s60, s60, 0x%x" % F_XN)
    e.label(L_CD)
    I("s_lshl_b32 s61, %s, 2" % sW)
    I("s_add_u32 s60, s60, s61")
    I("v_mov_b32 v50, s60")
    stamp("crit_stored")
    I("s_waitcnt vmcnt(0)")
    I("s_mov_b32 s60, 0x9E3779B1")
    I("v_mul_lo_u32 %s, %s, s60" % (vNon, vNon))
    I("v_add_u32 %s, 0x7F4A7C15, %s" % (vNon, vNon))
    I("s_mov_b64 exec, 1")
    I("buffer_store_dword %s, v50, %s, 0 offen %s" % (vNon, WS, SC))
    I("s_mov_b64 exec, -1")
    L_NC2 = e.newlabel()
    I("s_branch %s" % L_NC2)
    e.label(L_NCP)
    I("s_mov_b32 s60, 0x9E3779B1")
    I("v_mul_lo_u32 %s, %s, s60" % (vNon, vNon))
    I("v_add_u32 %s, 0x7F4A7C15, %s" % (vNon, vNon))
    e.label(L_NC2)
    stamp("crit_flagged")
    L_NCE = e.newlabel()
    I("s_barrier")
    I("s_cmp_eq_u32 s68, 0")
    I("s_cbranch_scc1 %s" % L_NCE)
    I("v_add_u32 v49, 32768, v49")
    I("v_mov_b32 v60, 0x3f803f80")
    I("v_mov_b32 v61, 0x3f803f80")
    I("v_mov_b32 v62, 0x3f803f80")
    I("v_mov_b32 v63, 0x3f803f80")
    I("s_mov_b32 s61, %s" % sW)
    L_t = e.label()
    I("s_lshl_b32 s60, s61, 5")
    I("v_lshl_add_u32 v50, v47, 3, s60")
    traddr("v50", "v50")
    for ks in range(6):
        d = 64 + 4 * ks
        I("ds_read_b64_tr_b16 %s, v50 offset:%d" % (v(d, 2), ks * 8192))
        I("ds_read_b64_tr_b16 %s, v50 offset:%d" % (v(d + 2, 2), ks * 8192 + 1024))
    I("s_lshl_b32 s60, s61, 10")
    I("s_add_u32 s60, s60, s70")
    I("v_add_u32 v52, s60, %s" % vL16)
    I("s_lshl_b32 s60, s61, 6")
    I("s_add_u32 s60, s60, s73")
    I("v_lshl_add_u32 v53, %s, 4, s60" % vG)
    I("v_cmp_eq_u32 vcc, 0, %s" % vM)
    I("v_mov_b32 v54, 0x%x" % OOB)
    I("v_cndmask_b32_e64 v53, v54, v53, vcc")
    L_k = e.newlabel()
    for ks in range(6):
        d = 64 + 4 * ks
        if ks >= 4:
            I("s_cmp_le_u32 s68, %d" % ks)
            I("s_cbranch_scc1 %s" % L_k)
            e.opt = "ncks"
        I("s_waitcnt lgkmcnt(%d)" % (10 - 2 * ks))
        I("buffer_store_dwordx4 %s, v52, %s, 0 offen %s" % (v(d, 4), WS, SC))
        I("v_add_u32 v52, s71, v52")
        I("v_mfma_f32_16x16x32_bf16 v[56:59], %s, v[60:63], %s" % (v(d, 4), "0" if ks == 0 else "v[56:59]"))
    e.opt = False
    e.label(L_k)
    I("s_waitcnt lgkmcnt(0)")
    I("s_nop 7")
    I("buffer_store_dwordx4 v[56:59], v53, %s, 0 offen %s" % (WS, SC))
    I("s_add_u32 s61, s61, 4")
    I("s_cmp_lt_u32 s61, s72")
    I("s_cbranch_scc1 %s" % L_t)
    e.label(L_NCE)
    I("s_cmp_eq_u32 s68, 0")
    I("s_cselect_b32 s74, 0x%x, s74" % OOB)
    I("v_mov_b32 v41, s74")
    e.vmq = ["POLL"]
    e.lgq = []
    stamp("nc_done")
    if cfg.stop_after == 0:
        I("s_waitcnt vmcnt(0)")
        flag_store("v41")
        I("s_branch L_fin")

    I("s_lshl_b32 s64, %s, 3" % sRB8)
    I("s_lshl_b32 s60, %s, 1" % sW)
    I("s_add_u32 s64, s64, s60")
    I("v_and_b32 v44, 31, %s" % vLane)
    I("s_lshl_b32 s60, %s, 8" % sHP)
    I("s_add_u32 s60, s60, 0x%x" % F_WQ)
    I("v_lshl_add_u32 v45, v44, 2, s60")
    I("v_subrev_u32 v46, 20, v44")
    I("v_lshrrev_b32 v47, 2, v46")
    I("v_and_b32 v46, 3, v46")
    I("s_lshl_b32 s61, %s, 3" % sRB8)
    I("s_sub_u32 s61, s61, 1")
    I("s_cmp_eq_u32 %s, 0" % sRB8)
    I("s_cselect_b32 s61, s64, s61")
    I("s_sub_u32 s62, s64, 1")
    I("v_add_u32 v48, s62, v47")
    I("v_mov_b32 v49, s61")
    I("v_cmp_eq_u32 vcc, 0, v47")
    I("v_cndmask_b32_e64 v48, v48, v49, vcc")
    I("v_lshlrev_b32 v48, 7, v48")
    I("v_lshl_add_u32 v48, v46, 2, v48")
    I("v_add_u32 v48, 0x%x, v48" % F_XN)
    I("v_cmp_gt_u32 vcc, 20, v44")
    I("v_cndmask_b32_e64 v45, v48, v45, vcc")
    vAa, vAb, vAh, vB = "v46", "v47", "v48", "v49"
    I("s_mul_i32 s60, s64, %d" % RTK)
    I("v_add_u32 %s, s60, %s" % (vAa, vL16))
    I("v_add_u32 %s, %d, %s" % (vAb, RTK, vAa))
    I("s_mul_i32 s60, %s, %d" % (sRB8, 8 * RTK))
    I("s_lshl_b32 s61, %s, 10" % sW)
    I("s_add_u32 s60, s60, s61")
    I("s_sub_u32 s60, s60, %d" % RTK)
    I("s_cmp_eq_u32 %s, 0" % sRB8)
    I("s_cselect_b32 s60, 0x%x, s60" % OOB)
    I("v_add_u32 %s, s60, %s" % (vAh, vL16))
    I("s_mul_i32 s60, %s, 153600" % sHP)
    I("s_add_u32 s60, s60, 0x%x" % WQ)
    I("v_add_u32 %s, s60, %s" % (vB, vL16))
    I("s_mul_i32 s65, %s, 7680" % sW)
    I("v_and_b32 v50, 7, %s" % vM)
    I("v_lshl_add_u32 v50, %s, 3, v50" % vG)
    I("v_lshlrev_b32 v50, 4, v50")
    I("v_add_u32 v51, 0x10000, v50")
    I("v_add_u32 v52, 0x20000, v50")
    I("s_barrier")
    poll("v45")
    stamp("k1_polled")

    def k1_chunk_ops(c):
        ops = []

        def bop(i):
            def f():
                if i == 0:
                    I("s_add_u32 m0, s65, %d" % (c * 4 * 7680))
                if i == 4:
                    I("s_add_u32 m0, m0, 4096")
                if i == 7:
                    I("s_mov_b64 exec, 0xffffffff")
                vm("buffer_load_dwordx4 %s, %s, m0 offen offset:%d lds" % (vB, WS, (i & 3) * 1024), ("B1", c))
                if i == 7:
                    I("s_mov_b64 exec, -1")
            return f
        for i in range(8):
            ops.append(bop(i))
        ops.append(lambda: vm("buffer_load_dwordx4 %s, %s, %s, %s offen %s" % (a(160 + 4 * c, 4), vAh, WS, sK4(c), SC), ("Ah", c)))
        for i in range(4):
            ks = 4 * c + i
            ops.append(lambda ks=ks: vm("buffer_load_dwordx4 %s, %s, %s, %s offen offset:%d %s" % (a(4 * ks, 4), vAa, WS, sK4(ks >> 2), (ks & 3) * 1024, SC), ("A", ks)))
            ops.append(lambda ks=ks: vm("buffer_load_dwordx4 %s, %s, %s, %s offen offset:%d %s" % (a(80 + 4 * ks, 4), vAb, WS, sK4(ks >> 2), (ks & 3) * 1024, SC), ("A", ks)))
        return ops

    for c in range(3):
        for op in k1_chunk_ops(c):
            op()
    I("v_and_b32 v53, 1, %s" % vM)
    I("v_cmp_eq_u32 %s, 1, v53" % mP)
    I("v_lshl_add_u32 v54, %s, 2, v53" % vG)
    I("v_cmp_le_u32 %s, v54, %s" % (mC0, vM))
    I("v_add_u32 v54, 2, v54")
    I("v_cmp_le_u32 %s, v54, %s" % (mC1, vM))
    I("v_cmp_eq_u32 %s, 0, %s" % (mG0, vG))
    I("v_cmp_eq_u32 %s, 1, %s" % (mG1, vG))
    I("v_cmp_eq_u32 %s, 3, %s" % (mG3, vG))
    vSel = 56
    I("v_mov_b32 v54, 0x0c0c0100")
    I("v_mov_b32 v55, 0x01000c0c")
    I("v_cndmask_b32_e64 v54, v54, v55, %s" % mP)
    I("v_mov_b32 v55, 0x0c0c0302")
    I("v_mov_b32 v60, 0x03020c0c")
    I("v_cndmask_b32_e64 v55, v55, v60, %s" % mP)
    I("v_mov_b32 v60, 0x0c0c0c0c")
    I("v_cndmask_b32_e64 v56, v54, v60, %s" % mC0)
    I("v_cndmask_b32_e64 v57, v55, v60, %s" % mC1)
    I("v_cndmask_b32_e64 v58, v60, v54, %s" % mC0)
    I("v_cndmask_b32_e64 v59, v60, v55, %s" % mC1)
    I("s_mov_b32 s66, 0x7f800000")
    I("s_cmp_eq_u32 s64, 0")
    I("s_cselect_b32 s66, 0x%x, s66" % f2u(-1e30))
    imgs = {}
    imgs["wo"] = Img("v42", 0)
    I("s_mul_i32 s60, %s, 102400" % sCB)
    I("s_add_u32 s60, s60, 0x%x" % WO)
    img_setup(imgs["wo"], "s60")

    ACC, HACC = 64, 128
    BB = 180

    def k1_bread(ks, t):
        dst = a(BB + 32 * (ks & 1) + 4 * t, 4)
        byte = ks * 7680 + t * 1024
        if t < 7:
            bread(dst, byte, ("b", ks))
        else:
            lg("ds_read_b128 %s, v%d offset:%d" % (dst, 50 + (byte >> 16), byte & 0xffff), ("b", ks))

    wait(vm=("B1", 0))
    I("s_barrier")
    stamp("k1_b0")
    for t in range(8):
        k1_bread(0, t)
    pend = []
    for ks in range(20):
        c = ks >> 2
        if ks == 4:
            pend += k1_chunk_ops(3)
        if ks == 8:
            for k in range(5):
                def f(k=k):
                    wflag_addr(k)("v63")
                    vm("buffer_load_dword %s, v63, %s, 0 offen %s" % (v(vWF + k), WS, SC), "wf")
                pend.append(f)
            pend += k1_chunk_ops(4)
        if ks == 2:
            pend.append(lambda: flag_store("v41"))
        if (ks & 3) == 3 and ks < 19:
            assert not pend or ks < 15
            wait(vm=("B1", c + 1))
            I("s_barrier")
        if ks == 15:
            wait(vm="wf")
            check_wflag(0, wflag_addr(0))
            pend += dma_ops(imgs["wo"], 0, 60, "Bwo0")
        wait(vm=[("A", ks), ("Ah", c)], lg=("b", ks))
        bb = BB + 32 * (ks & 1)
        n = 0
        for t in range(8):
            for r in range(2):
                d = v(ACC + 32 * r + 4 * t, 4)
                X, W = a(80 * r + 4 * ks, 4), a(bb + 4 * t, 4)
                cin = "0" if ks == 0 else d
                if t < 5:
                    I("v_mfma_f32_16x16x32_bf16 %s, %s, %s, %s" % (d, W, X, cin))
                else:
                    I("v_mfma_f32_16x16x32_bf16 %s, %s, %s, %s" % (d, X, W, cin))
                if r == 0 and ks < 19:
                    k1_bread(ks + 1, t)
                if r == 1 and (t & 1) == 1 and pend:
                    pend.pop(0)()
                if r == 1 and t == 0 and pend and ks >= 8:
                    pend.pop(0)()
        Lh = e.newlabel()
        I("s_cmp_lg_u32 %s, %d" % (sW, ks & 3))
        I("s_cbranch_scc1 %s" % Lh)
        e.opt = Lh
        for hi, t in enumerate((2, 4, 3, 5, 6, 7)):
            d = v(HACC + 4 * hi, 4)
            X, W = a(160 + 4 * c, 4), a(bb + 4 * t, 4)
            cin = "0" if c == 0 else d
            if t < 5:
                I("v_mfma_f32_16x16x32_bf16 %s, %s, %s, %s" % (d, W, X, cin))
            else:
                I("v_mfma_f32_16x16x32_bf16 %s, %s, %s, %s" % (d, X, W, cin))
        e.opt = False
        e.label(Lh)
    while pend:
        pend.pop(0)()
    stamp("k1_mfma")

    XCH = 61440
    Kb, Ka, Kp = 152, 158, 164
    Vt = 170
    Qb, Qa = 188, 196
    I("s_mul_i32 s60, %s, 6144" % sW)
    I("s_add_u32 s60, s60, %d" % XCH)
    I("v_add_u32 v44, s60, %s" % vL16)
    I("s_mul_i32 s60, %s, 3072" % sW)
    I("s_add_u32 s60, s60, %d" % (XCH + 24576))
    I("v_lshl_add_u32 v45, %s, 3, s60" % vLane)

    def acc(r, t):
        return ACC + 32 * r + 4 * t

    def pack(dst, src):
        I("v_cvt_pk_bf16_f32 v%d, v%d, v%d" % (dst, src, src + 1))
        I("v_cvt_pk_bf16_f32 v%d, v%d, v%d" % (dst + 1, src + 2, src + 3))

    for hi in range(6):
        lg("ds_write_b128 v44, %s offset:%d" % (v(HACC + 4 * hi, 4), hi * 1024), "xw")
    for r, K in ((1, Kb), (0, Ka)):
        pack(K, acc(r, 2))
        pack(K + 2, acc(r, 4))
        pack(K + 4, acc(r, 3))
        for t in range(3):
            pack(Vt + 6 * t + 2 + 2 * r, acc(r, 5 + t))
        if r == 1:
            for s_, src in enumerate((Kb, Kb + 2, Kb + 4, Vt + 4, Vt + 10, Vt + 16)):
                lg("ds_write_b64 v45, %s offset:%d" % (v(src, 2), 3072 + s_ * 512), "xw")
    for r, K, Q in ((1, Kb, Qb), (0, Ka, Qa)):
        pack(Q, acc(r, 0))
        pack(Q + 6, acc(r, 1))
    I("s_cmp_lt_u32 %s, 3" % sW)
    I("s_cselect_b32 s60, %s, 0" % sW)
    I("s_lshl_b32 s61, s60, 11")
    I("s_add_u32 s61, s61, %d" % XCH)
    I("v_add_u32 v60, s61, %s" % vL16)
    I("s_lshl_b32 s61, s60, 10")
    I("s_add_u32 s61, s61, %d" % (XCH + 24576))
    I("v_lshl_add_u32 v61, %s, 3, s61" % vLane)
    wait(lg0=True)
    I("s_barrier")
    RP = 64
    for ww in range(4):
        for k in range(2):
            lg("ds_read_b128 %s, v60 offset:%d" % (v(RP + 8 * ww + 4 * k, 4), ww * 6144 + k * 1024), ("rp", ww))
    for K, Q in ((Kb, Qb), (Ka, Qa)):
        I("v_mov_b32 v62, 0")
        I("v_mov_b32 v63, 0")
        I("v_permlane16_swap_b32 v62, v%d" % (K + 2))
        I("v_permlane16_swap_b32 v63, v%d" % (K + 3))
        I("v_cndmask_b32_e64 v%d, 0, v62, %s" % (Q + 2, mG1))
        I("v_cndmask_b32_e64 v%d, 0, v63, %s" % (Q + 3, mG1))
        I("v_cndmask_b32_e64 v%d, 0, v62, %s" % (Q + 4, mG3))
        I("v_cndmask_b32_e64 v%d, 0, v63, %s" % (Q + 5, mG3))
    S = 96

    def s_mfma(Kc, Kpv, Q):
        I("v_mfma_f32_16x16x32_bf16 %s, %s, %s, 0" % (v(S, 4), v(Kc, 4), v(Q, 4)))
        I("v_mfma_f32_16x16x32_bf16 %s, %s, %s, 0" % (v(S + 4, 4), v(Kpv, 4), v(Q, 4)))
        I("v_mfma_f32_16x16x32_bf16 %s, %s, %s, 0" % (v(S + 8, 4), v(Kc + 2, 4), v(Q + 4, 4)))
        I("v_mfma_f32_16x16x32_bf16 %s, %s, %s, 0" % (v(S + 12, 4), v(Kpv + 2, 4), v(Q + 4, 4)))

    s_mfma(Kb, Ka, Qb)
    wait(lg=("rp", 1))
    for k in range(0, 8, 2):
        I("v_add_f32 v%d, v%d, v%d" % (RP + k, RP + k, RP + 8 + k))
        I("v_add_f32 v%d, v%d, v%d" % (RP + k + 1, RP + k + 1, RP + 9 + k))
    wait(lg=("rp", 3))
    for k in range(8):
        I("v_add_f32 v%d, v%d, v%d" % (RP + 16 + k, RP + 16 + k, RP + 24 + k))
    for k in range(8):
        I("v_add_f32 v%d, v%d, v%d" % (RP + k, RP + k, RP + 16 + k))
    pack(RP + 8, RP)
    pack(RP + 10, RP + 4)
    lg("ds_write_b64 v61, %s" % v(RP + 8, 2), "xw")
    lg("ds_write_b64 v61, %s offset:512" % v(RP + 10, 2), "xw")

    T = 112
    P = 128
    OO = 136
    SCALE = 20 ** -0.5 * math.log2(math.e)
    I("s_mov_b32 s67, 0x%x" % f2u(SCALE))

    def softmax(first):
        for h in range(2):
            c_, p_, t = S + 8 * h, S + 8 * h + 4, T + 8 * h
            I("v_cndmask_b32_e64 v%d, v%d, v%d, %s" % (t, c_, c_ + 1, mP))
            I("v_cndmask_b32_e64 v%d, v%d, v%d, %s" % (t + 1, c_ + 2, c_ + 3, mP))
            I("v_cndmask_b32_e64 v%d, v%d, v%d, %s" % (t + 2, p_, p_ + 1, mP))
            I("v_cndmask_b32_e64 v%d, v%d, v%d, %s" % (t + 3, p_ + 2, p_ + 3, mP))
        if first:
            for h in range(2):
                t = T + 8 * h
                I("v_min_f32 v%d, s66, v%d" % (t + 2, t + 2))
                I("v_min_f32 v%d, s66, v%d" % (t + 3, t + 3))
        for h in range(2):
            t = T + 8 * h
            I("v_cndmask_b32_e64 v%d, v%d, v%d, %s" % (t, t + 2, t, mC0))
            I("v_cndmask_b32_e64 v%d, v%d, v%d, %s" % (t + 1, t + 3, t + 1, mC1))
        for h in range(2):
            t = T + 8 * h
            I("v_max_f32 v%d, v%d, v%d" % (t + 2, t, t + 1))
        reduce_g(["v%d" % (T + 2), "v%d" % (T + 10)], "v_max_f32", T + 4)
        for h in range(2):
            t = T + 8 * h
            I("v_mul_f32_e64 v%d, v%d, -s67" % (t + 2, t + 2))
        for h in range(2):
            t = T + 8 * h
            I("v_fma_f32 v%d, v%d, s67, v%d" % (t, t, t + 2))
            I("v_fma_f32 v%d, v%d, s67, v%d" % (t + 1, t + 1, t + 2))
        for h in range(2):
            t = T + 8 * h
            I("v_exp_f32 v%d, v%d" % (t, t))
            I("v_exp_f32 v%d, v%d" % (t + 1, t + 1))
        for h in range(2):
            t = T + 8 * h
            I("v_add_f32 v%d, v%d, v%d" % (t + 2, t, t + 1))
        reduce_g(["v%d" % (T + 2), "v%d" % (T + 10)], "v_add_f32", T + 4)
        for h in range(2):
            t = T + 8 * h
            I("v_rcp_f32 v%d, v%d" % (t + 2, t + 2))
        for h in range(2):
            t = T + 8 * h
            I("v_mul_f32 v%d, v%d, v%d" % (t, t, t + 2))
            I("v_mul_f32 v%d, v%d, v%d" % (t + 1, t + 1, t + 2))
        for h in range(2):
            t = T + 8 * h
            I("v_cvt_pk_bf16_f32 v%d, v%d, v%d" % (t, t, t + 1))
        for h in range(2):
            t = T + 8 * h
            for k in range(4):
                I("v_perm_b32 v%d, v%d, v%d, v%d" % (P + 4 * h + k, t, t, vSel + k))

    def pv(off, dst, d2):
        I("v_mfma_f32_16x16x32_bf16 %s, %s, %s, 0" % (v(OO, 4), v(Vt + off, 4), v(P, 4)))
        I("v_mfma_f32_16x16x32_bf16 %s, %s, %s, 0" % (v(OO + 4, 4), v(Vt + 6 + off, 4), v(P, 4)))
        I("v_mfma_f32_16x16x32_bf16 %s, %s, %s, 0" % (v(OO + 8, 4), v(Vt + 6 + off, 4), v(P + 4, 4)))
        I("v_mfma_f32_16x16x32_bf16 %s, %s, %s, 0" % (v(OO + 12, 4), v(Vt + 12 + off, 4), v(P + 4, 4)))

    def ofin(dst, d2):
        pack(dst, OO)
        for k in range(4):
            I("v_cndmask_b32_e64 v%d, v%d, v%d, %s" % (OO + 4 + k, OO + 8 + k, OO + 4 + k, mG0))
        pack(dst + 2, OO + 4)
        pack(d2, OO + 12)
        I("v_permlane16_swap_b32 v%d, v%d" % (dst, dst + 2))
        I("v_permlane16_swap_b32 v%d, v%d" % (dst + 1, dst + 3))

    I("v_and_b32 v62, 1, %s" % vG)
    I("v_lshrrev_b32 v63, 1, %s" % vG)
    I("v_lshl_add_u32 v43, v62, 1, v63")
    I("v_lshlrev_b32 v43, 8, v43")
    I("v_lshl_add_u32 v43, %s, 4, v43" % vM)
    I("s_mul_i32 s60, s64, %d" % RTK)
    I("s_mul_i32 s61, %s, 1280" % sHP)
    I("s_add_u32 s60, s60, s61")
    I("s_add_u32 s60, s60, 0x%x" % O_)
    I("v_add_u32 v46, s60, v43")
    I("v_add_u32 v47, %d, v46" % RTK)
    I("s_add_u32 s60, s60, 1024")
    I("v_mul_u32_u24 v48, %d, %s" % (RTK, vG))
    I("v_lshl_add_u32 v48, %s, 4, v48" % vM)
    I("v_add_u32 v48, s60, v48")
    I("v_cmp_gt_u32 vcc, 2, %s" % vG)
    I("v_mov_b32 v49, 0x%x" % OOB)
    I("v_cndmask_b32_e64 v48, v49, v48, vcc")
    I("s_lshr_b32 s60, s64, 1")
    I("s_lshl_b32 s60, s60, 7")
    I("s_lshl_b32 s61, %s, 2" % sHP)
    I("s_add_u32 s60, s60, s61")
    I("s_add_u32 s60, s60, 0x%x" % F_O)
    I("v_mov_b32 v49, s60")

    OB, OA, O2 = 204, 208, 212
    softmax(False)
    wait(lg0=True)
    I("s_barrier")
    for s_, dst in enumerate((Kp, Kp + 2, Kp + 4, Vt, Vt + 6, Vt + 12)):
        lg("ds_read_b64 %s, v45 offset:%d" % (v(dst, 2), s_ * 512), "pv")
    pv(2, OB, O2 + 2)
    wait(lg0=True)
    s_mfma(Ka, Kp, Qa)
    ofin(OB, O2 + 2)
    vm("buffer_store_dwordx4 %s, v47, %s, 0 offen %s" % (v(OB, 4), WS, SC), "st")
    softmax(True)
    pv(0, OA, O2)
    I("s_barrier")
    ofin(OA, O2)
    vm("buffer_store_dwordx4 %s, v46, %s, 0 offen %s" % (v(OA, 4), WS, SC), "st")
    I("v_permlane16_swap_b32 v%d, v%d" % (O2, O2 + 2))
    I("v_permlane16_swap_b32 v%d, v%d" % (O2 + 1, O2 + 3))
    vm("buffer_store_dwordx4 %s, v48, %s, 0 offen %s" % (v(O2, 4), WS, SC), "st")
    stamp("k1_att")
    late = dma_ops(imgs["wo"], 60, 40, "Bwo1")
    for op in late[:6]:
        op()
    wait(vm="st")
    flag_store("v49")
    for op in late[6:]:
        op()
    stamp("k1_flag")
    if cfg.stop_after == 1:
        I("s_branch L_fin")

    I("s_lshl_b32 s64, %s, 2" % sRB4)
    I("s_add_u32 s64, s64, %s" % sW)
    I("s_mul_i32 s65, s64, %d" % RTK)
    I("s_mul_i32 s60, %s, 2560" % sCB)
    I("s_add_u32 s60, s60, s65")
    vS0, vS1, vA0 = "v50", "v51", "v52"
    I("v_add_u32 %s, s60, v43" % vS0)
    I("v_lshrrev_b32 v62, 1, %s" % vG)
    I("v_lshlrev_b32 v62, 8, v62")
    I("v_lshl_add_u32 v62, %s, 4, v62" % vM)
    I("s_add_u32 s60, s60, 2048")
    I("v_add_u32 v62, s60, v62")
    I("v_and_b32 v63, 1, %s" % vG)
    I("v_cmp_eq_u32 vcc, 0, v63")
    I("v_mov_b32 v63, 0x%x" % OOB)
    I("v_cndmask_b32_e64 %s, v63, v62, vcc" % vS1)
    I("v_add_u32 %s, s65, %s" % (vA0, vL16))
    vSt, vSl = "v53", "v54"
    I("s_lshl_b32 s60, s64, 10")
    I("s_lshl_b32 s61, %s, 7" % sCB)
    I("s_add_u32 s61, s61, s60")
    I("v_lshl_add_u32 v62, %s, 3, s61" % vM)
    I("v_cndmask_b32_e64 %s, v63, v62, %s" % (vSt, mG0))
    I("v_lshlrev_b32 v62, 8, %s" % vG)
    I("v_lshl_add_u32 v62, %s, 3, v62" % vM)
    I("v_add_u32 %s, s60, v62" % vSl)
    vFs = "v55"
    I("s_lshl_b32 s60, s64, 7")
    I("s_lshl_b32 s61, %s, 2" % sCB)
    I("s_add_u32 s60, s60, s61")
    I("v_mov_b32 %s, s60" % vFs)

    SACC = 64
    CSV = 84
    TMP = 112

    def unswap_unpack(src, dst, fma=None):
        for k in (0, 1, 4, 5, 8, 9):
            I("v_permlane16_swap_b32 v%d, v%d" % (src + k, src + k + 2))
        unpack(src, dst)

    def unpack(src, dst, add=False):
        for k, r in enumerate((0, 1, 2, 3, 4, 5, 6, 7, 8, 9)):
            if not add:
                I("v_lshlrev_b32 v%d, 16, v%d" % (dst + 2 * k, src + r))
                I("v_and_b32 v%d, 0xffff0000, v%d" % (dst + 2 * k + 1, src + r))
            else:
                I("v_lshlrev_b32 v%d, 16, v%d" % (TMP, src + r))
                I("v_and_b32 v%d, 0xffff0000, v%d" % (TMP + 1, src + r))
                I("v_pk_add_f32 %s, %s, %s" % (v(dst + 2 * k, 2), v(dst + 2 * k, 2), v(TMP, 2)))

    def store5(src, base):
        for k in (0, 1):
            I("v_permlane16_swap_b32 v%d, v%d" % (src + k, src + k + 2))
        I("s_mov_b32 s60, 0x%x" % base)
        vm("buffer_store_dwordx4 %s, %s, %s, s60 offen %s" % (v(src, 4), vS0, WS, SC), "st")
        for k in (4, 5):
            I("v_permlane16_swap_b32 v%d, v%d" % (src + k, src + k + 2))
        vm("buffer_store_dwordx4 %s, %s, %s, s60 offen offset:1024 %s" % (v(src + 4, 4), vS0, WS, SC), "st")
        for k in (8, 9):
            I("v_permlane16_swap_b32 v%d, v%d" % (src + k, src + k + 2))
        vm("buffer_store_dwordx4 %s, %s, %s, s60 offen %s" % (v(src + 8, 4), vS1, WS, SC), "st")

    def stats_out(src, base):
        t = TMP
        I("s_mov_b32 s61, 0x3f803f80")
        I("v_and_b32 v%d, 1, %s" % (t + 4, vG))
        I("v_cmp_eq_u32 vcc, 0, v%d" % (t + 4))
        for k in range(4):
            I("v_mov_b32 v%d, 0" % (t + k))
        for k in range(8, 12):
            I("v_dot2c_f32_bf16 v%d, s61, v%d" % (t + (k & 1), src + k))
            I("v_dot2c_f32_bf16 v%d, v%d, v%d" % (t + 2 + (k & 1), src + k, src + k))
        for k in range(4):
            I("v_cndmask_b32_e64 v%d, 0, v%d, vcc" % (t + k, t + k))
        for k in range(8):
            I("v_dot2c_f32_bf16 v%d, s61, v%d" % (t + (k & 1), src + k))
            I("v_dot2c_f32_bf16 v%d, v%d, v%d" % (t + 2 + (k & 1), src + k, src + k))
        I("v_add_f32 v%d, v%d, v%d" % (t, t, t + 1))
        I("v_add_f32 v%d, v%d, v%d" % (t + 1, t + 2, t + 3))
        reduce_g([v(t), v(t + 1)], "v_add_f32", t + 2)
        I("s_mov_b32 s60, 0x%x" % base)
        vm("buffer_store_dwordx2 %s, %s, %s, s60 offen %s" % (v(t, 2), vSt, WS, SC), "st")

    def colsum_load(csbase, tile_s, nparts, ncols, dst):
        I("s_mul_i32 s60, %s, %d" % (tile_s, nparts * 512))
        I("s_add_u32 s60, s60, 0x%x" % csbase)
        I("v_lshl_add_u32 v62, %s, 2, s60" % vLane)
        for p in range(nparts):
            vm("buffer_load_dword v%d, v62, %s, 0 offen offset:%d %s" % (dst + 2 * p, WS, p * 512, SC), "cs")
            vm("buffer_load_dword v%d, v62, %s, 0 offen offset:%d %s" % (dst + 2 * p + 1, WS, p * 512 + 256, SC), "cs")

    def colsum_fin(nparts, ntiles, dst):
        for p in range(1, nparts):
            I("v_add_f32 v%d, v%d, v%d" % (dst, dst, dst + 2 * p))
            I("v_add_f32 v%d, v%d, v%d" % (dst + 1, dst + 1, dst + 2 * p + 1))
        I("v_lshlrev_b32 v62, 4, %s" % vG)
        for t in range(ntiles):
            for j in range(4):
                lg("ds_bpermute_b32 v%d, v62, v%d offset:%d" % (CSV + 4 * t + j, dst + (t >= 4), ((16 * t + j) * 4) % 256), "csb")
            if t == 2 or t == 5:
                wait(lg0=True)
        wait(lg0=True)

    def ln_consts(s0, mean, A_, B_, R_, double, keep=None):
        ops = []
        ops.append(lambda: I("v_add_f32 v%d, v%d, v%d" % (s0, s0, s0 + 2)))
        ops.append(lambda: I("v_add_f32 v%d, v%d, v%d" % (s0 + 1, s0 + 1, s0 + 3)))
        for sw in ("v_permlane32_swap_b32", "v_permlane16_swap_b32"):
            ops.append(lambda: I("v_mov_b32 v%d, v%d" % (s0 + 2, s0)))
            ops.append(lambda: I("v_mov_b32 v%d, v%d" % (s0 + 3, s0 + 1)))
            ops.append(lambda sw=sw: I("%s v%d, v%d" % (sw, s0, s0 + 2)))
            ops.append(lambda sw=sw: I("%s v%d, v%d" % (sw, s0 + 1, s0 + 3)))
            ops.append(lambda: I("v_add_f32 v%d, v%d, v%d" % (s0, s0, s0 + 2)))
            ops.append(lambda: I("v_add_f32 v%d, v%d, v%d" % (s0 + 1, s0 + 1, s0 + 3)))
        inv = "0x%x" % f2u(1.0 / 640)
        eps = "0x%x" % f2u(1e-5)
        ops.append(lambda: I("v_mul_f32 %s, %s, v%d" % (mean, inv, s0)))
        ops.append(lambda: I("v_mul_f32 v%d, %s, v%d" % (s0 + 1, inv, s0 + 1)))
        ops.append(lambda: I("v_fma_f32 v%d, -%s, %s, v%d" % (s0 + 1, mean, mean, s0 + 1)))
        ops.append(lambda: I("v_max_f32 v%d, 0, v%d" % (s0 + 1, s0 + 1)))
        ops.append(lambda: I("v_add_f32 v%d, %s, v%d" % (s0, eps, s0 + 1)))
        if double:
            ops.append(lambda: I("v_rsq_f32 %s, v%d" % (keep, s0)))
            ops.append(lambda: I("v_fmamk_f32 v%d, v%d, %s, v%d" % (s0, s0, eps, s0 + 1)))
        ops.append(lambda: I("v_rsq_f32 v%d, v%d" % (s0 + 2, s0)))
        ops.append(lambda: I("v_sqrt_f32 %s, v%d" % (R_, s0)))
        c0 = -2.0 * math.sqrt(2.0 / math.pi) * math.log2(math.e)
        c1 = c0 * 0.044715
        ops.append(lambda: I("v_mul_f32 %s, 0x%x, v%d" % (A_, f2u(c0), s0 + 2)))
        ops.append(lambda: I("v_mul_f32 v%d, v%d, v%d" % (s0 + 3, s0 + 2, s0 + 2)))
        ops.append(lambda: I("v_mul_f32 v%d, v%d, v%d" % (s0 + 3, s0 + 3, s0 + 2)))
        ops.append(lambda: I("v_mul_f32 %s, 0x%x, v%d" % (B_, f2u(c1), s0 + 3)))
        return ops

    def gelu(accs, css, outs, nmean, A_, B_, R_):
        n = len(accs)
        t = TMP
        grp = 4
        for i0 in range(0, n, grp):
            idx = list(range(i0, min(n, i0 + grp)))
            for k, i in enumerate(idx):
                I("v_pk_fma_f32 %s, %s, %s, %s op_sel_hi:[1,0,1] neg_lo:[0,1,0] neg_hi:[0,1,0]" % (v(accs[i], 2), v(css[i], 2), v(nmean, 2), v(accs[i], 2)))
            for k, i in enumerate(idx):
                I("v_pk_mul_f32 %s, %s, %s" % (v(t + 2 * k, 2), v(accs[i], 2), v(accs[i], 2)))
            for k, i in enumerate(idx):
                I("v_pk_fma_f32 %s, %s, %s, %s op_sel_hi:[1,0,0]" % (v(t + 2 * k, 2), v(t + 2 * k, 2), v(B_, 2), v(A_, 2)))
            for k, i in enumerate(idx):
                I("v_pk_mul_f32 %s, %s, %s" % (v(t + 2 * k, 2), v(t + 2 * k, 2), v(accs[i], 2)))
            for k, i in enumerate(idx):
                I("v_exp_f32 v%d, v%d" % (t + 2 * k, t + 2 * k))
                I("v_exp_f32 v%d, v%d" % (t + 2 * k + 1, t + 2 * k + 1))
            for k, i in enumerate(idx):
                I("v_pk_fma_f32 %s, %s, %s, %s op_sel_hi:[1,0,0]" % (v(t + 2 * k, 2), v(t + 2 * k, 2), v(R_, 2), v(R_, 2)))
            for k, i in enumerate(idx):
                I("v_rcp_f32 v%d, v%d" % (t + 2 * k, t + 2 * k))
                I("v_rcp_f32 v%d, v%d" % (t + 2 * k + 1, t + 2 * k + 1))
            for k, i in enumerate(idx):
                I("v_pk_mul_f32 %s, %s, %s" % (v(t + 2 * k, 2), v(t + 2 * k, 2), v(accs[i], 2)))
            for k, i in enumerate(idx):
                I("v_cvt_pk_bf16_f32 v%d, v%d, v%d" % (outs[i], t + 2 * k, t + 2 * k + 1))

    def poll_addr(dst, base, cnt_log2, rt_expr_s):
        I("s_lshl_b32 s60, %s, 7" % rt_expr_s)
        I("s_add_u32 s60, s60, 0x%x" % base)
        I("v_and_b32 %s, %d, %s" % (dst, (1 << cnt_log2) - 1, vLane))
        I("v_lshl_add_u32 %s, %s, 2, s60" % (dst, dst))

    def small_loop(img, aload, init, fillers, vis_ks, nks=20, extra=None):
        BBs = 196
        def rd(ks, t):
            bread(a(BBs + 20 * (ks % 3) + 4 * t, 4), img.slot(5 * ks + t) * 1024, ("b", ks))
        for ks in range(nks):
            if extra and ks in extra:
                extra[ks]()
            if ks == vis_ks - 2:
                I("s_barrier")
            wait(vm=("A", ks), lg=("b", ks))
            for t in range(5):
                d = v(SACC + 4 * t, 4)
                cin = d if (ks > 0 or init) else "0"
                I("v_mfma_f32_16x16x32_bf16 %s, %s, %s, %s" % (d, a(BBs + 20 * (ks % 3) + 4 * t, 4), aload.reg(ks), cin))
                if ks + 2 < nks:
                    rd(ks + 2, t)
                if t in (1, 3) and fillers:
                    fillers.pop(0)()
        while fillers:
            fillers.pop(0)()

    class ALoad:
        def __init__(self, base, vaddr_of, nring=49):
            self.base, self.va, self.nring = base, vaddr_of, nring

        def reg(self, ks):
            return a(4 * (ks % self.nring), 4)

        def issue(self, ks):
            vm("buffer_load_dwordx4 %s, %s, %s, %s offen offset:%d %s" % (self.reg(ks), self.va(ks), WS, sK4(ks >> 2), (ks & 3) * 1024, SC), ("A", ks))

    def preread(img):
        e.forget("A")
        e.forget("b")
        for ks in range(2):
            for t in range(5):
                bread(a(196 + 20 * ks + 4 * t, 4), img.slot(5 * ks + t) * 1024, ("b", ks))

    def next_img(name, vreg, ring0, base, per_tile, tile_s, k):
        check_wflag(k, wflag_addr(k))
        im = Img(vreg, ring0)
        I("s_mul_i32 s60, %s, %d" % (tile_s, per_tile))
        I("s_add_u32 s60, s60, 0x%x" % base)
        img_setup(im, "s60")
        imgs[name] = im
        return im

    I("s_mov_b32 s60, 0x%x" % XR)
    vm("buffer_load_dwordx4 %s, %s, %s, s60 offen %s" % (v(vThp, 4), vS0, WS, SC), "xr")
    vm("buffer_load_dwordx4 %s, %s, %s, s60 offen offset:1024 %s" % (v(vThp + 4, 4), vS0, WS, SC), "xr")
    vm("buffer_load_dwordx4 %s, %s, %s, s60 offen %s" % (v(vThp + 8, 4), vS1, WS, SC), "xr")
    w1i = next_img("w1", "v41", 100, W1, 102400, sCB, 1)
    colsum_load(CS1, sCB, 4, 80, 120)
    I("s_lshr_b32 s61, s64, 1")
    poll_addr("v44", F_O, 4, "s61")
    I("v_add_u32 v45, 0x%x, %s" % (O_, vA0))
    wait(vm="cs")
    I("s_barrier")
    preread(imgs["wo"])
    unswap_unpack(vThp, SACC)
    wait(lg0=True)
    colsum_fin(4, 5, 120)
    poll("v44")
    stamp("k2_polled")
    al = ALoad(O_, lambda ks: "v45")
    for ks in range(20):
        al.issue(ks)
    early = dma_ops(w1i, 0, 36, "Bn0") + dma_ops(w1i, 36, 24, "Bn0b")
    small_loop(imgs["wo"], al, True, early[:9], 99)
    stamp("k2_mfma")
    for t in range(5):
        pack(vThp + 2 * t, SACC + 4 * t)
    store5(vThp, H_)
    stats_out(vThp, ST2)
    for op in early[9:]:
        op()
    I("v_add_u32 v46, 0x%x, %s" % (F_H, vFs))
    wait(vm="st")
    flag_store("v46")
    stamp("k2_flag")
    I("s_barrier")
    dma(w1i, 60, 40, "Bn1")
    if cfg.stop_after == 2:
        I("s_branch L_fin")

    preread(w1i)
    w2i = next_img("w2", "v42", 40, W2, 102400, sCB, 2)
    poll_addr("v44", F_H, 3, "s64")
    I("v_add_u32 v45, 0x%x, %s" % (H_, vA0))
    poll("v44")
    stamp("k3_polled")
    I("s_mov_b32 s60, 0x%x" % ST2)
    vm("buffer_load_dwordx2 v[120:121], %s, %s, s60 offen %s" % (vSl, WS, SC), "sl")
    vm("buffer_load_dwordx2 v[122:123], %s, %s, s60 offen offset:128 %s" % (vSl, WS, SC), "sl")
    al = ALoad(H_, lambda ks: "v45")
    for ks in range(20):
        al.issue(ks)
    early = dma_ops(w2i, 0, 36, "Bn0") + dma_ops(w2i, 36, 24, "Bn0b")
    gA, gB, gR = 124, 126, 128
    fill = ln_consts(120, vMean, v(gA), v(gB), v(gR), True, vRs1)
    small_loop(w1i, al, False, fill + early[:9], 7)
    stamp("k3_mfma")
    OUTP = 132
    gelu([SACC + 2 * i for i in range(10)], [CSV + 2 * i for i in range(10)], [OUTP + i for i in range(10)], 34, gA, gB, gR)
    store5(OUTP, H1)
    for op in early[9:]:
        op()
    I("v_add_u32 v46, 0x%x, %s" % (F_H1, vFs))
    wait(vm="st")
    flag_store("v46")
    stamp("k3_flag")
    I("s_barrier")
    dma(w2i, 60, 40, "Bn1")
    if cfg.stop_after == 3:
        I("s_branch L_fin")

    preread(w2i)
    w3i = next_img("w3", "v41", 140, W3, 20 * 7168, sHP, 3)
    colsum_load(CS3, sHP, 5, 112, 136)
    I("v_lshrrev_b32 v44, 3, %s" % vLane)
    I("v_min_u32 v44, 2, v44")
    I("s_sub_u32 s60, s64, 1")
    I("v_add_u32 v44, s60, v44")
    I("v_max_i32 v44, 0, v44")
    I("v_min_i32 v44, 127, v44")
    I("v_lshlrev_b32 v44, 7, v44")
    I("v_and_b32 v45, 7, %s" % vLane)
    I("v_lshl_add_u32 v44, v45, 2, v44")
    I("v_add_u32 v44, 0x%x, v44" % F_H1)
    I("s_lshl_b32 s60, s64, 4")
    I("s_movk_i32 s61, %d" % RTK)
    for q, dl in enumerate((-1, 1, -2, 2)):
        I("s_add_i32 s62, s60, %d" % dl)
        I("v_add_u32 v60, s62, %s" % vM)
        I("v_lshrrev_b32 v61, 4, v60")
        I("v_and_b32 v62, 15, v60")
        I("v_mul_lo_u32 v61, v61, s61")
        I("v_lshl_add_u32 v61, v62, 4, v61")
        I("v_lshl_add_u32 v61, %s, 8, v61" % vG)
        I("v_add_u32 v61, 0x%x, v61" % H1)
        I("v_cmp_gt_u32 vcc, 2048, v60")
        I("v_mov_b32 v62, 0x%x" % OOB)
        I("v_cndmask_b32_e64 v%d, v62, v61, vcc" % (56 + q))
    unswap_unpack(vThp, SACC)
    I("v_mul_f32_e64 v120, -%s, %s" % (vMean, vRs1))
    I("v_mov_b32 v122, %s" % vRs1)
    for k in range(10):
        I("v_pk_fma_f32 %s, %s, v[122:123], v[120:121] op_sel_hi:[1,0,0]" % (v(SACC + 2 * k, 2), v(SACC + 2 * k, 2)))
    wait(vm="cs")
    wait(lg0=True)
    colsum_fin(5, 7, 136)
    poll("v44")
    stamp("k4_polled")
    al = ALoad(H1, lambda ks: "v%d" % (56 + ks // 5))
    for ks in range(20):
        al.issue(ks)
    early = dma_ops(w3i, 0, 36, "Bn0") + dma_ops(w3i, 36, 24, "Bn0b")
    small_loop(w2i, al, True, early[:9], 7)
    stamp("k4_mfma")
    for t in range(5):
        pack(vTx1 + 2 * t, SACC + 4 * t)
    store5(vTx1, X1)
    stats_out(vTx1, ST4)
    for op in early[9:]:
        op()
    I("v_add_u32 v46, 0x%x, %s" % (F_X1, vFs))
    wait(vm="st")
    flag_store("v46")
    stamp("k4_flag")
    I("s_barrier")
    dma(w3i, 60, 40, "Bn1")
    if cfg.stop_after == 4:
        I("s_branch L_fin")

    B5 = 160
    A5 = 140

    def rd5(ks, t):
        bread(a(B5 + 28 * (ks & 1) + 4 * t, 4), w3i.slot(7 * ks + t) * 1024, ("b", ks))
    e.forget("A")
    e.forget("b")
    for t in range(7):
        rd5(0, t)
    w4i = next_img("w4", "v42", 120, W4, 54 * 5120, sCB, 4)
    I("s_lshl_b32 s66, %s, 3" % sRB8)
    I("s_lshl_b32 s60, %s, 1" % sW)
    I("s_add_u32 s66, s66, s60")
    I("v_and_b32 v44, 15, %s" % vLane)
    I("v_lshrrev_b32 v45, 3, v44")
    I("v_and_b32 v44, 7, v44")
    I("v_add_u32 v45, s66, v45")
    I("v_lshlrev_b32 v45, 7, v45")
    I("v_lshl_add_u32 v44, v44, 2, v45")
    I("v_add_u32 v44, 0x%x, v44" % F_X1)
    I("s_mul_i32 s60, s66, %d" % RTK)
    I("s_add_u32 s60, s60, 0x%x" % X1)
    I("v_add_u32 v45, s60, %s" % vL16)
    I("v_add_u32 v46, %d, v45" % RTK)
    I("s_lshl_b32 s60, s66, 10")
    I("s_add_u32 s60, s60, 0x%x" % ST4)
    I("v_lshlrev_b32 v47, 8, %s" % vG)
    I("v_lshl_add_u32 v47, %s, 3, v47" % vM)
    I("v_add_u32 v47, s60, v47")
    I("s_mul_i32 s60, s66, %d" % RTG)
    I("s_mul_i32 s61, %s, %d" % (sHP, 14 * 256))
    I("s_add_u32 s60, s60, s61")
    I("s_add_u32 s60, s60, 0x%x" % G_)
    I("v_add_u32 v56, s60, v43")
    I("v_add_u32 v57, %d, v56" % RTG)
    I("v_and_b32 v58, 1, %s" % vG)
    I("v_mul_u32_u24 v58, %d, v58" % RTG)
    I("v_lshrrev_b32 v59, 1, %s" % vG)
    I("v_lshl_add_u32 v58, v59, 8, v58")
    I("v_lshl_add_u32 v58, %s, 4, v58" % vM)
    I("s_add_u32 s60, s60, 3072")
    I("v_add_u32 v58, s60, v58")
    I("s_lshr_b32 s60, s66, 1")
    I("s_lshl_b32 s60, s60, 7")
    I("s_lshl_b32 s61, %s, 2" % sHP)
    I("s_add_u32 s60, s60, s61")
    I("s_add_u32 s60, s60, 0x%x" % F_G)
    I("v_mov_b32 v59, s60")
    poll("v44")
    stamp("k5_polled")
    for r in range(2):
        vm("buffer_load_dwordx2 %s, v47, %s, 0 offen offset:%d %s" % (v(120 + 4 * r, 2), WS, 1024 * r, SC), "sl")
        vm("buffer_load_dwordx2 %s, v47, %s, 0 offen offset:%d %s" % (v(122 + 4 * r, 2), WS, 1024 * r + 128, SC), "sl")
    for ks in range(20):
        for r in range(2):
            vm("buffer_load_dwordx4 %s, v%d, %s, %s offen offset:%d %s" % (a(80 * r + 4 * ks, 4), 45 + r, WS, sK4(ks >> 2), (ks & 3) * 1024, SC), ("A", ks))
    late2 = dma_ops(w3i, 100, 40, "Bn2")
    cM, cA, cB, cR = (128, 130), (132, 134), (136, 138), (196, 198)
    fill = []
    for r in range(2):
        fill += ln_consts(120 + 4 * r, v(cM[r]), v(cA[r]), v(cB[r]), v(cR[r]), False)
    pend = list(late2)
    for ks in range(20):
        if ks == 3:
            pend += dma_ops(w4i, 0, 20, "B4a")
        if ks == 4:
            I("s_barrier")
            pend += dma_ops(w4i, 20, 28, "B4a")
        if ks == 9:
            I("s_barrier")
            pend += dma_ops(w4i, 48, 32, "B4a")
        if ks == 13:
            wait(vm="Bn2")
            I("s_barrier")
            pend += dma_ops(w4i, 80, 28, "B4a")
        wait(vm=("A", ks), lg=("b", ks))
        bb = B5 + 28 * (ks & 1)
        for t in range(7):
            for r in range(2):
                d = v(A5 + 28 * r + 4 * t, 4)
                I("v_mfma_f32_16x16x32_bf16 %s, %s, %s, %s" % (d, a(bb + 4 * t, 4), a(80 * r + 4 * ks, 4), "0" if ks == 0 else d))
                if r == 0 and ks < 19:
                    rd5(ks + 1, t)
                if r == 1:
                    if t in (1, 3, 5) and pend:
                        pend.pop(0)()
                    elif fill and ks >= 1:
                        fill.pop(0)()
    while pend:
        pend.pop(0)()
    assert not fill
    stamp("k5_mfma")
    I("s_barrier")
    rest = dma_ops(w4i, 108, 52, "B4b")
    GP = 200
    for r in range(2):
        for pr in range(3):
            o = GP + 4 * ((r * 3 + pr) & 1)
            base = A5 + 28 * r + 8 * pr
            gelu([base + 2 * i for i in range(4)], [CSV + 8 * pr + 2 * i for i in range(4)], [o + i for i in range(4)], cM[r], cA[r], cB[r], cR[r])
            I("v_permlane16_swap_b32 v%d, v%d" % (o, o + 2))
            I("v_permlane16_swap_b32 v%d, v%d" % (o + 1, o + 3))
            vm("buffer_store_dwordx4 %s, v%d, %s, 0 offen offset:%d %s" % (v(o, 4), 56 + r, WS, pr * 1024, SC), "st")
            for _ in range(2):
                if rest:
                    rest.pop(0)()
        base = A5 + 28 * r + 24
        gelu([base, base + 2], [CSV + 24, CSV + 26], [208 + 2 * r, 209 + 2 * r], cM[r], cA[r], cB[r], cR[r])
    I("v_permlane16_swap_b32 v208, v210")
    I("v_permlane16_swap_b32 v209, v211")
    vm("buffer_store_dwordx4 v[208:211], v58, %s, 0 offen %s" % (WS, SC), "st")
    stamp("k5_gelu")
    while rest:
        rest.pop(0)()
    wait(vm="st")
    flag_store("v59")
    stamp("k5_flag")
    if cfg.stop_after == 5:
        I("s_branch L_fin")

    unpack(vThp, SACC)
    for k in (0, 1, 4, 5, 8, 9):
        I("v_permlane16_swap_b32 v%d, v%d" % (vTx1 + k, vTx1 + k + 2))
    unpack(vTx1, SACC, add=True)
    I("s_lshr_b32 s61, s64, 1")
    poll_addr("v44", F_G, 4, "s61")
    I("s_mul_i32 s60, s64, %d" % RTG)
    I("s_add_u32 s60, s60, 0x%x" % G_)
    I("v_add_u32 v45, s60, %s" % vL16)
    I("s_mov_b32 s36, s20")
    I("s_mov_b32 s37, s21")
    I("s_mov_b32 s38, %d" % (2048 * 1280))
    I("s_mul_i32 s60, %s, 160" % sCB)
    I("s_add_u32 s60, s60, s65")
    I("v_mul_u32_u24 v46, 1280, %s" % vM)
    I("v_add_u32 v46, s60, v46")
    I("v_lshrrev_b32 v47, 8, v43")
    I("v_lshl_add_u32 v47, v47, 4, v46")
    I("v_lshrrev_b32 v48, 1, %s" % vG)
    I("v_lshl_add_u32 v48, v48, 4, v46")
    I("v_add_u32 v48, 128, v48")
    I("v_and_b32 v49, 1, %s" % vG)
    I("v_cmp_eq_u32 vcc, 0, v49")
    I("v_mov_b32 v49, 0x%x" % OOB)
    I("v_cndmask_b32_e64 v48, v49, v48, vcc")
    wait(vm="B4b")
    I("s_barrier")
    preread(w4i)
    poll("v44")
    stamp("k6_polled")
    al = ALoad(G_, lambda ks: "v45", nring=49)
    for ks in range(32):
        al.issue(ks)
    Le = e.newlabel()
    I("s_or_b32 s60, s2, %s" % sW)
    I("s_mov_b32 s61, 0x%x" % OOB)
    I("s_cmp_eq_u32 s60, 0")
    I("s_cselect_b32 s60, 0x%x, s61" % EPOCH)
    I("v_mov_b32 v49, s60")
    flag_store("v49")
    fill = []
    extra = {}

    def r1():
        I("s_barrier")
        b = dma_ops(w4i, 160, 60, "B6a")
        for k in range(15):
            fill.append(b[k])
            if 32 + k < 44:
                fill.append(lambda k=k: al.issue(32 + k))

    def r2():
        I("s_barrier")

    def r2b():
        b = dma_ops(w4i, 220, 52, "B6b")
        for k in range(13):
            fill.append(b[k])
            if 44 + k < 54:
                fill.append(lambda k=k: al.issue(44 + k))

    def v1():
        assert not fill or True
        wait(vm="B6a")
        I("s_barrier")

    def v2():
        wait(vm="B6b")
        I("s_barrier")
    extra[12] = r1
    extra[26] = lambda: (r2(), r2b())
    extra[30] = v1
    extra[42] = v2
    small_loop(w4i, al, True, fill, 999, nks=54, extra=extra)
    stamp("k6_mfma")
    for t in range(5):
        pack(OUTP + 2 * t, SACC + 4 * t)
    for k in (0, 1):
        I("v_permlane16_swap_b32 v%d, v%d" % (OUTP + k, OUTP + k + 2))
    vm("buffer_store_dwordx4 %s, v47, %s, 0 offen" % (v(OUTP, 4), SB), "st")
    for k in (4, 5):
        I("v_permlane16_swap_b32 v%d, v%d" % (OUTP + k, OUTP + k + 2))
    vm("buffer_store_dwordx4 %s, v47, %s, 0 offen offset:64" % (v(OUTP + 4, 4), SB), "st")
    for k in (8, 9):
        I("v_permlane16_swap_b32 v%d, v%d" % (OUTP + k, OUTP + k + 2))
    vm("buffer_store_dwordx4 %s, v48, %s, 0 offen" % (v(OUTP + 8, 4), SB), "st")
    e.label("L_fin")
    if cfg.prof:
        I("s_waitcnt vmcnt(0)")
        stamp("end")
        I("s_memrealtime s[92:93]")
        I("s_getreg_b32 s94, hwreg(HW_REG_XCC_ID)")
        I("s_waitcnt lgkmcnt(0)")
        I("v_writelane_b32 v9, s92, 62")
        I("v_writelane_b32 v9, s94, 63")
        I("s_lshl_b32 s60, s2, 2")
        I("s_add_u32 s60, s60, %s" % sW)
        I("s_lshl_b32 s60, s60, 8")
        I("s_add_u32 s60, s60, 0x%x" % PROF)
        I("v_lshl_add_u32 v44, %s, 2, s60" % vLane)
        I("buffer_store_dword v9, v44, %s, 0 offen" % WS)
    e.label(DONE)
    I("s_endpgm")
    e.label("L_end")
    return e


def wrap(e):
    hdr = open("cdna_kernels/%s.s.ref" % NAME).read().split("\n")
    top = []
    for l in hdr:
        if l.startswith("; @launch"):
            top.append("; @launch grid=(256,1,1) block=(256,1,1) lds=%d" % LDS)
        elif l.startswith(";"):
            top.append(l)
        else:
            break
    s = "\n".join(top) + "\n"
    s += '.amdgcn_target "amdgcn-amd-amdhsa--gfx950"\n.text\n.globl %s_kernel\n.p2align 8\n.type %s_kernel,@function\n' % (NAME, NAME)
    s += ".set CODE_KB, (L_end - L_pc + 1023) / 1024\n"
    s += "%s_kernel:\n" % NAME
    s += e.text()
    s += ".fill 300, 4, 0xBF800000\n"
    s += """.section .rodata,"a"
.p2align 6
.amdhsa_kernel %s_kernel
  .amdhsa_next_free_vgpr 512
  .amdhsa_next_free_sgpr 102
  .amdhsa_accum_offset 256
  .amdhsa_group_segment_fixed_size 0
  .amdhsa_kernarg_size 88
  .amdhsa_user_sgpr_count 2
  .amdhsa_user_sgpr_kernarg_segment_ptr 1
  .amdhsa_system_sgpr_workgroup_id_x 1
.end_amdhsa_kernel
""" % NAME
    return s


if __name__ == "__main__":
    cfg = Cfg()
    out = "cdna_kernels/%s.s" % NAME
    for arg in sys.argv[1:]:
        k, _, val = arg.partition("=")
        if k == "out":
            out = val
        else:
            setattr(cfg, k, int(val))
    e = gen(cfg)
    open(out, "w").write(wrap(e))
    if cfg.prof:
        open(out[:-2] + ".stamps", "w").write(" ".join(cfg.stamps))
    print("wrote", out, "lines", len(e.out), "nops", e.nops)
```

```python
from asmlib import *
def body(kind, n=40):
    L = []; A = L.append
    A("s_load_dwordx2 s[4:5], s[0:1], 0")
    A("s_load_dwordx2 s[6:7], s[0:1], 8")
    A("s_load_dwordx2 s[16:17], s[0:1], 16")
    A("v_lshrrev_b32 v2, 6, v0"); A("v_and_b32 v1, 63, v0"); A("s_nop 0")
    A("v_readfirstlane_b32 s20, v2")
    A("s_waitcnt lgkmcnt(0)")
    A("s_and_b32 s21, s2, 7"); A("s_lshr_b32 s21, s16, s21"); A("s_bitcmp1_b32 s21, 0"); A("s_cbranch_scc0 L_end_%s" % kind)
    A("s_mov_b32 s8, s4"); A("s_mov_b32 s9, s5"); A("s_mov_b32 s10, 0x8000000"); A("s_mov_b32 s11, 0x20000")
    A("s_mov_b32 s12, s6"); A("s_mov_b32 s13, s7"); A("s_mov_b32 s14, 0x100000"); A("s_mov_b32 s15, 0x20000")
    A("s_and_b32 s23, s2, s17")
    A("s_mul_i32 s23, s23, %d" % (n*4096))
    A("s_mul_i32 s24, s20, %d" % (n*1024))
    A("s_add_u32 s23, s23, s24")
    A("v_lshlrev_b32 v3, 4, v1"); A("v_add_u32 v3, s23, v3")
    A("v_add_u32 v6, 0x4000000, v3")
    if kind.startswith("rw_small"):
        for i in range(4): A("buffer_load_dwordx4 v[20:23], v6, s[8:11], 0 offen offset:%d" % (i*1024))
        A("s_waitcnt vmcnt(0)")
    A("s_barrier")
    A("s_memrealtime s[50:51]")
    A("s_memtime s[44:45]"); A("s_waitcnt lgkmcnt(0)")
    for i in range(n):
        if kind in ("rd", "mix", "mixp"):
            A("buffer_load_dwordx4 v[%d:%d], v3, s[8:11], 0 offen" % (20+4*(i%20), 23+4*(i%20)))
        if kind in ("wrsc1", "mix"):
            A("buffer_store_dwordx4 v[8:11], v6, s[8:11], 0 offen sc1")
        if kind in ("wr", "mixp"):
            A("buffer_store_dwordx4 v[8:11], v6, s[8:11], 0 offen")
        if kind == "wrnt":
            A("buffer_store_dwordx4 v[8:11], v6, s[8:11], 0 offen nt")
        if kind in ("rw_small", "rw_small_rd"):
            if kind == "rw_small_rd": A("buffer_load_dwordx4 v[%d:%d], v3, s[8:11], 0 offen" % (20+4*(i%20), 23+4*(i%20)))
            A("buffer_store_dwordx4 v[8:11], v6, s[8:11], 0 offen offset:%d" % ((i % 4)*1024))
            A("v_add_u32 v3, 1024, v3")
            continue
        A("v_add_u32 v3, 1024, v3"); A("v_add_u32 v6, 1024, v6")
    A("s_waitcnt vmcnt(0)")
    A("s_memtime s[46:47]"); A("s_memrealtime s[52:53]"); A("s_waitcnt lgkmcnt(0)")
    A("s_sub_u32 s46, s46, s44")
    A("v_mov_b32 v8, s46"); A("v_mov_b32 v9, s50"); A("v_mov_b32 v10, s52"); A("v_mov_b32 v11, 0")
    A("s_lshl_b32 s27, s2, 2"); A("s_add_u32 s27, s27, s20"); A("s_lshl_b32 s27, s27, 4")
    A("v_mov_b32 v2, s27")
    A("s_mov_b64 exec, 1")
    A("buffer_store_dwordx4 v[8:11], v2, s[12:15], 0 offen")
    A("L_end_%s:" % kind)
    return "\n".join(L)
K = ["rd", "rw_small", "rw_small_rd"]
build_bench("mb11.s", [("k_"+k, body(k), 128, 102, 256) for k in K])
```
